```python
import torch

def _softmax(x, axis=-1):
    return torch.softmax(x, dim=axis)
def _gelu(x):
    return torch.nn.functional.gelu(x, approximate="tanh")
def _silu(x):
    return torch.nn.functional.silu(x)
def _sigmoid(x):
    return torch.sigmoid(x)
def _layernorm(x, axis=-1, eps=1e-5):
    m = x.mean(dim=axis, keepdim=True)
    v = x.var(dim=axis, keepdim=True, unbiased=False)
    return (x - m) / torch.sqrt(v + eps)
def _scatter_add(tgt, idx, src, axis=0):
    return tgt.clone().index_add_(axis, idx, src)
def _segment_sum(src, seg, n):
    out = torch.zeros((n,) + src.shape[1:], dtype=src.dtype)
    return out.index_add_(0, seg, src)
def _pad(x, pw):
    flat = tuple(v for pair in reversed(pw) for v in pair)
    return torch.nn.functional.pad(x, flat)

kernel_name = 'interleave_layers__grouped_kv_mqa__ssm_conv_h3__prompt'

def setup_inputs():

    _w = (lambda a: (lambda t: t.to(torch.bfloat16) if t.is_floating_point() else t)(torch.as_tensor(a)))
    def _A_setup():
        B, S, D, H = 1, 2048, 512, 32
        Dh = D // H
        return {
            "x": _w((lambda *s: torch.randn(*s, dtype=torch.bfloat16) * 0.05)(B, S, D)),
            "wq": _w((lambda *s: torch.randn(*s, dtype=torch.bfloat16) * 0.05)(D, H * Dh)),
            "wk": _w((lambda *s: torch.randn(*s, dtype=torch.bfloat16) * 0.05)(D, Dh)),
            "wv": _w((lambda *s: torch.randn(*s, dtype=torch.bfloat16) * 0.05)(D, Dh)),
            "wo": _w((lambda *s: torch.randn(*s, dtype=torch.bfloat16) * 0.05)(H * Dh, D)),
        }
    _A_in = _A_setup()

    def _B_setup():
        B, S, D = 1, 2048, 512
        ks = 4
        return {
            "q": _w((lambda *s: torch.randn(*s, dtype=torch.bfloat16) * 0.05)(B, S, D)),
            "k": _w((lambda *s: torch.randn(*s, dtype=torch.bfloat16) * 0.4)(B, S, D)),
            "v": _w((lambda *s: torch.randn(*s, dtype=torch.bfloat16) * 0.4)(B, S, D)),
            "shift_k": _w((lambda *s: torch.randn(*s, dtype=torch.bfloat16) * 0.4)(D, ks) * 0.5),
            "ssm_k": _w((lambda *s: torch.randn(*s, dtype=torch.bfloat16) * 0.8)(D, S) * (1.0 / S ** 0.5)),
            "ssm_D": _w((lambda *s: torch.randn(*s, dtype=torch.bfloat16) * 0.4)(D)),
        }
    _B_in = _B_setup()

    return {
        "A_x": _A_in["x"],
        "A_wq": _A_in["wq"],
        "A_wk": _A_in["wk"],
        "A_wv": _A_in["wv"],
        "A_wo": _A_in["wo"],
        "B_q": _B_in["q"],
        "B_k": _B_in["k"],
        "B_v": _B_in["v"],
        "B_shift_k": _B_in["shift_k"],
        "B_ssm_k": _B_in["ssm_k"],
        "B_ssm_D": _B_in["ssm_D"],
    }

def reference(A_x, A_wq, A_wk, A_wv, A_wo, B_q, B_k, B_v, B_shift_k, B_ssm_k, B_ssm_D):
    def _A_ref(x, wq, wk, wv, wo):
        B, S, D = x.shape
        H = 32
        Dh = D // H
        q = (lambda x, *d: x.permute(*d))((x @ wq).reshape(B, S, H, Dh), 0, 2, 1, 3)
        k = x @ wk
        v = x @ wv
        scores = torch.einsum("bhqd,bkd->bhqk", q, k) * (Dh ** -0.5)
        p = _softmax(scores, axis=-1)
        o = torch.einsum("bhqk,bkd->bhqd", p, v)
        return (lambda x, *d: x.permute(*d))(o, 0, 2, 1, 3).reshape(B, S, H * Dh) @ wo

    def _B_ref(q, k, v, shift_k, ssm_k, ssm_D):
        B, S, D = q.shape
        ks = shift_k.shape[-1]
        k_pad = _pad(k, ((0, 0), (ks - 1, 0), (0, 0)))
        k_shift = torch.zeros_like(k)
        for t in range(ks):
            k_shift = k_shift + k_pad[:, t:t + S, :] * shift_k[:, ks - 1 - t][None, None, :]
        kv = k_shift * v
        L = 2 * S
        kv_pad = _pad(kv, ((0, 0), (0, S), (0, 0)))
        kf_pad = _pad(ssm_k, ((0, 0), (0, S)))
        kv_f = (lambda x, axes=(-2,-1): torch.fft.rfft2(x.float(), dim=axes))(kv_pad[:, None, :, :], axes=(1, 2))
        kf_f = (lambda x, axes=(-2,-1): torch.fft.rfft2(x.float(), dim=axes))(kf_pad[:, None, :], axes=(1, 2))
        kf_f = (lambda x, *d: x.permute(*d))(kf_f, 1, 2, 0)
        y_f = kv_f * kf_f[None, :, :, :]
        y = (lambda x, s, axes=(-2,-1): torch.fft.irfft2(x, s=s, dim=axes).to(torch.bfloat16))(y_f, (1, L), axes=(1, 2))[:, 0, :S, :]
        y = y + kv * ssm_D[None, None, :]
        return q * y

    x = A_x
    x = x + _A_ref(_layernorm(x, axis=-1), A_wq, A_wk, A_wv, A_wo)
    x = x + _B_ref(_layernorm(x, axis=-1), B_k, B_v, B_shift_k, B_ssm_k, B_ssm_D)
    x = x + _A_ref(_layernorm(x, axis=-1), A_wq, A_wk, A_wv, A_wo)
    x = x + _B_ref(_layernorm(x, axis=-1), B_k, B_v, B_shift_k, B_ssm_k, B_ssm_D)
    return x
```

```python
import re

TRANS = ("v_exp_f32", "v_log_f32", "v_rcp_f32", "v_rsq_f32", "v_sqrt_f32", "v_sin_f32", "v_cos_f32")


def regs_of(tok):
    tok = tok.strip()
    tok = tok.lstrip("-")
    m = re.fullmatch(r"abs\((.*)\)", tok)
    if m:
        tok = m.group(1)
    tok = tok.strip("|")
    m = re.fullmatch(r"([vsa])(\d+)", tok)
    if m:
        return [(m.group(1), int(m.group(2)))]
    m = re.fullmatch(r"([vsa])\[(\d+):(\d+)\]", tok)
    if m:
        return [(m.group(1), i) for i in range(int(m.group(2)), int(m.group(3)) + 1)]
    if tok == "vcc":
        return [("s", 106), ("s", 107)]
    if tok == "vcc_lo":
        return [("s", 106)]
    if tok == "vcc_hi":
        return [("s", 107)]
    if tok == "m0":
        return [("s", 124)]
    if tok == "exec":
        return [("s", 126), ("s", 127)]
    return []


class Ins:
    def __init__(self, text):
        self.text = text
        t = text.split(";")[0].strip()
        self.label = t.endswith(":")
        self.op = t.split()[0] if t else ""
        rest = t[len(self.op):].strip()
        ops = [o.strip() for o in re.split(r",(?![^\[]*\])", rest)] if rest else []
        mods = ""
        if ops:
            parts = ops[-1].split(None, 1)
            ops[-1] = parts[0]
            mods = parts[1] if len(parts) > 1 else ""
        self.ops, self.mods = ops, mods
        op = self.op
        self.kind = "other"
        self.w, self.r = [], []
        self.A = self.B = self.C = []
        R = [regs_of(o) for o in ops]
        if self.label or op.startswith("."):
            self.kind = "label"
        elif op.startswith("v_mfma"):
            self.kind = "mfma"
            self.w = R[0]
            self.A, self.B, self.C = R[1], R[2], R[3]
            self.r = R[1] + R[2] + R[3]
            self.passes = 8 if "32x32" in op else 4
        elif op.startswith("v_smfmac"):
            self.kind = "mfma"
            self.w = R[0]
            self.A, self.B, self.C = R[1] + R[3], R[2], R[0]
            self.r = R[0] + R[1] + R[2] + R[3]
            self.passes = 8 if "32x32" in op else 4
        elif op.startswith("v_"):
            self.kind = "valu"
            if op == "v_nop":
                pass
            elif "permlane" in op and "swap" in op:
                self.w = R[0] + R[1]
                self.r = R[0] + R[1]
            else:
                self.w = R[0]
                self.r = sum(R[1:], [])
                if op.startswith(("v_fmac", "v_dot2c", "v_writelane")) or "_dpp" in op or "UNUSED_PRESERVE" in mods:
                    self.r = self.r + R[0]
                if op.startswith(("v_add_co", "v_sub_co", "v_addc_co")):
                    self.w = R[0] + R[1]
                    self.r = sum(R[2:], [])
        elif op.startswith("ds_"):
            self.kind = "ds"
            if op.startswith(("ds_read", "ds_bpermute", "ds_permute", "ds_swizzle")):
                self.w = R[0]
                self.r = sum(R[1:], [])
            else:
                self.r = sum(R, [])
        elif op.startswith(("buffer_", "global_")):
            self.kind = "vmem"
            self.lds = bool(re.search(r"\blds\b", mods)) or "_lds_" in op
            if "load" in op and not self.lds:
                self.w = R[0]
                self.r = sum(R[1:], [])
            else:
                self.r = sum(R, [])
            if self.lds:
                self.r = self.r + [("s", 124)]
            self.wide_store = []
            if "store" in op and ("x4" in op or "x3" in op):
                self.wide_store = R[0] if op.startswith("buffer_") else R[1]
        elif op.startswith(("s_load", "s_memtime", "s_memrealtime", "s_buffer_load")):
            self.kind = "smem"
            self.w = R[0]
            self.r = sum(R[1:], [])
        elif op.startswith("s_"):
            self.kind = "salu"
            if op.startswith(("s_cmp", "s_cbranch", "s_branch", "s_waitcnt", "s_nop", "s_barrier", "s_setprio", "s_sleep", "s_endpgm", "s_bitcmp", "s_setpc")):
                self.r = sum(R, [])
            else:
                self.w = R[0] if R else []
                self.r = sum(R[1:], [])
                if "saveexec" in op:
                    self.w = self.w + regs_of("exec")
        self.trans = op.replace("_e32", "").replace("_e64", "") in TRANS
        self.dpp = "_dpp" in op

    def slots(self, phys):
        if self.kind == "label":
            return 0
        if self.op == "s_nop":
            return int(self.ops[0], 0) + 1
        if phys:
            if self.trans:
                return 2
            if self.kind == "mfma":
                return 2
        return 1


def need(prod, cons):
    pw, pr = set(prod.w), set(prod.r)
    cw, cr = set(cons.w), set(cons.r)
    n, phys = 0, False
    if prod.kind == "valu":
        vw = {x for x in pw if x[0] in "va"}
        sw = {x for x in pw if x[0] == "s"}
        if cons.kind == "mfma" and vw & cr:
            n = max(n, 2)
        if cons.kind == "valu":
            if prod.trans and not cons.trans and vw & cr:
                n = max(n, 1)
            if (cons.dpp or "permlane" in cons.op) and vw & cr:
                n = max(n, 2)
            if cons.op.startswith(("v_readlane", "v_readfirstlane")) and vw & cr:
                n = max(n, 1)
            if sw & cr:
                n = max(n, 4 if cons.op.startswith(("v_readlane", "v_writelane")) else 2)
            if cons.op.startswith("v_cndmask") and sw & set(regs_of("vcc")):
                n = max(n, 2)
        if cons.kind == "vmem" and sw & cr:
            n = max(n, 5)
        if cons.kind in ("salu", "smem") and sw & cr:
            n = max(n, 1)
    if prod.kind == "mfma":
        big = prod.passes == 8
        if cons.kind == "mfma":
            if pw & set(cons.A + cons.B):
                n = max(n, 12 if big else 8); phys = True
            if pw & set(cons.C):
                if not (cons.C == prod.w and cons.passes == prod.passes):
                    n = max(n, 10 if big else 6); phys = True
            elif pw & cw:
                n = max(n, 10 if big else 6); phys = True
        elif cons.kind in ("valu", "vmem", "ds"):
            if pw & (cr | cw):
                n = max(n, 12 if big else 8); phys = True
            if cons.kind == "valu" and set(prod.C) & cw:
                n = max(n, 7 if big else 3); phys = True
    if prod.kind == "salu" and ("s", 124) in pw and cons.kind == "vmem" and getattr(cons, "lds", False):
        n = max(n, 1)
    if prod.kind == "vmem" and prod.wide_store and set(prod.wide_store) & cw:
        n = max(n, 2)
    return n, phys


class Prog:
    def __init__(self, name=""):
        self.name = name
        self.ins = []
        self.q = {"vm": [], "lg": []}
        self.nid = 0
        self.pend = {}
        self.blk = None
        self.bars = []
        self.nops_added = 0

    def _emit(self, i):
        if i.kind != "label":
            worst = 0
            d_c = d_p = 0
            for p in reversed(self.ins[-40:]):
                if p.kind != "label":
                    n, phys = need(p, i)
                    have = d_p if phys else d_c
                    worst = max(worst, n - have)
                d_c += p.slots(False)
                d_p += p.slots(True)
                if d_c >= 14:
                    break
            if worst > 0:
                self.nops_added += worst
                self.ins.append(Ins(f"s_nop {worst - 1}"))
        self.ins.append(i)

    def _cnt_after(self, qn, tid):
        q = self.q[qn]
        idx = [k for k, o in enumerate(q) if o["id"] == tid]
        if not idx:
            return None
        me = q[idx[0]]
        return idx[0], sum(1 for o in q[idx[0] + 1:] if o["blk"] is None or o["blk"] == me["blk"] or o["blk"] == self.blk)

    def wait(self, *toks):
        parts = {}
        for tok in toks:
            if tok is None:
                continue
            qn, tid = tok
            c = self._cnt_after(qn, tid)
            if c is None:
                continue
            k, n = c
            n = min(n, 63 if qn == "vm" else 15)
            if qn not in parts or k > parts[qn][0]:
                parts[qn] = (k, min(n, parts[qn][1]) if qn in parts else n)
            else:
                parts[qn] = (parts[qn][0], min(n, parts[qn][1]))
        if not parts:
            return
        s = "s_waitcnt"
        for qn, (k, n) in parts.items():
            s += f" vmcnt({n})" if qn == "vm" else f" lgkmcnt({n})"
            if self.blk is None:
                self.q[qn] = self.q[qn][k + 1:]
            else:
                done = self.q[qn][:k + 1]
                self.blkdone += [(qn, o) for o in done if o["blk"] != self.blk]
                self.q[qn] = self.q[qn][k + 1:]
        self._emit(Ins(s))

    def waitall(self, vm=True, lg=True):
        s = "s_waitcnt" + (" vmcnt(0)" if vm else "") + (" lgkmcnt(0)" if lg else "")
        for qn, f in (("vm", vm), ("lg", lg)):
            if f:
                if self.blk is not None:
                    self.blkdone += [(qn, o) for o in self.q[qn] if o["blk"] != self.blk]
                self.q[qn] = []
        self._emit(Ins(s))

    def e(self, text):
        tok = None
        for line in text.strip().split("\n"):
            line = line.strip()
            if not line:
                continue
            i = Ins(line)
            toks = [self.pend[r] for r in set(i.r + i.w) if r in self.pend]
            if i.kind in ("ds", "vmem") and i.w:
                qn = "lg" if i.kind == "ds" else "vm"
                toks = [self.pend[r] for r in set(i.r) if r in self.pend] + \
                       [self.pend[r] for r in set(i.w) if r in self.pend and self.pend[r][0] != qn]
            self.wait(*toks)
            self._emit(i)
            if i.kind in ("ds", "vmem"):
                qn = "lg" if i.kind == "ds" else "vm"
                self.nid += 1
                self.q[qn].append(dict(id=self.nid, blk=self.blk))
                tok = (qn, self.nid)
                for r in i.w:
                    self.pend[r] = tok
            elif i.kind == "smem":
                assert not self.q["lg"], "smem mixed with ds"
        return tok

    def begin_if(self, name):
        assert self.blk is None
        self.blk = name
        self.blkdone = []

    def end_if(self):
        for qn in ("vm", "lg"):
            old = [o for (q, o) in self.blkdone if q == qn]
            self.q[qn] = old + self.q[qn]
        self.blk = None

    def label(self, name):
        self._emit(Ins(name + ":"))

    def bar(self, name):
        self.bars.append(name)
        self._emit(Ins(f"s_barrier ; {name}"))

    def text(self):
        out = []
        for i in self.ins:
            out.append(i.text if i.kind == "label" else "    " + i.text)
        return "\n".join(out) + "\n"
```

```python
import sys, os
sys.path.insert(0, os.path.dirname(os.path.abspath(__file__)))
from asmlib import Prog

NAME = "interleave_layers__grouped_kv_mqa__ssm_conv_h3__prompt"
OPT = dict(stamps=0)
for a in sys.argv[2:]:
    k, v = a.split("=")
    OPT[k] = int(v)

EPOCH = 0
FLAG1 = 0x1000
FLAGH = 0x2000
FLAG2 = 0x3000
KV1 = 0x10000
KV2 = 0x30000
WQS = 0x100000
WOS = 0x180000
UR = 0x200000
YT = 0x400000
STAMP = 0x600000
WS_SIZE = 0x700000
ZP = 0
KVST = 0x100
QF = 0x400
OA = 0x2400
LP = 0x2800
XN = 0x2C00
YB = 0x4C00
PB = 0x6C00
RS = 2080
WKV = 0xAE00
UB = 0x12E00
HB = 0x15E00
CS = 4160
SX = 0x1E000
LDS_SIZE = 0x22000
SPIN = 20000
SCALE = 0x3EB8AA3B

sW, sO, sEP = 3, 4, 5
pX, pWQ, pWK, pWV, pWO, pBK, pBV, pSH, pSK, pSD, pOUT, pDBG, pWS = 8, 10, 12, 14, 16, 20, 22, 24, 26, 28, 30, 32, 34
WS = "s[36:39]"
SA, SB, SC = "s[40:43]", "s[44:47]", "s[48:51]"


def vr(a, n=1):
    return f"v{a}" if n == 1 else f"v[{a}:{a + n - 1}]"


def srd(p, base, ptr, size):
    p.e(f"s_mov_b32 s{base}, s{ptr}\ns_mov_b32 s{base + 1}, s{ptr + 1}\ns_mov_b32 s{base + 2}, {size}\ns_mov_b32 s{base + 3}, 0x20000")


_st = [0]


def stamp(p, idx):
    if not OPT["stamps"]:
        return
    p.waitall(vm=False)
    p.e("s_memrealtime s[92:93]")
    p.waitall(vm=False)
    p.e(f"v_writelane_b32 {p.stampreg}, s92, {idx}")


def stamp_flush(p):
    if not OPT["stamps"]:
        return
    p.e(f"s_mul_i32 s92, s{sO}, 12\ns_add_u32 s92, s92, s{sW}\ns_lshl_b32 s92, s92, 8\ns_add_u32 s92, s92, {STAMP}")
    p.e("v_lshlrev_b32 v1, 2, v0")
    p.e(f"buffer_store_dword {p.stampreg}, v1, {WS}, s92 offen")


def poll(p, name, load, regs, tmp_s):
    p.e(f"s_mov_b32 s{tmp_s}, {SPIN}")
    p.label(f"L_{name}")
    p.e(load)
    p.waitall(lg=False)
    for i, r in enumerate(regs):
        if i == 0:
            p.e(f"v_cmp_ne_u32 vcc, s{sEP}, v{r}")
        else:
            p.e(f"v_cmp_ne_u32 s[6:7], s{sEP}, v{r}\ns_or_b64 vcc, vcc, s[6:7]")
    p.e(f"s_cbranch_vccz L_{name}_ok")
    p.e(f"s_sleep 4\ns_sub_u32 s{tmp_s}, s{tmp_s}, 1\ns_cmp_lg_u32 s{tmp_s}, 0\ns_cbranch_scc1 L_{name}")
    p.label(f"L_{name}_ok")


def prologue():
    p = Prog("pro")
    p.e("s_cmp_ge_u32 s2, 256\ns_cbranch_scc1 L_exit")
    p.e("s_load_dwordx16 s[8:23], s[0:1], 0\ns_load_dwordx8 s[24:31], s[0:1], 64\ns_load_dwordx4 s[32:35], s[0:1], 96")
    p.e("v_lshrrev_b32 v1, 6, v0\nv_and_b32 v0, 63, v0")
    p.e(f"v_readfirstlane_b32 s{sW}, v1")
    p.e(f"s_and_b32 s6, s2, 7\ns_lshl_b32 s6, s6, 5\ns_lshr_b32 s7, s2, 3\ns_add_u32 s{sO}, s6, s7")
    p.waitall(vm=False)
    p.e(f"s_load_dword s{sEP}, s[{pWS}:{pWS + 1}], {EPOCH}")
    srd(p, 36, pWS, WS_SIZE)
    p.e(f"s_cmp_ge_u32 s{sW}, 8\ns_cbranch_scc1 L_helper")
    return p


aK, aV, IDX, aQ, aP, aL, aZ = 1, 2, 3, 4, 5, 6, 7
X, Q, T, O, S, K, V = 8, 16, 20, 24, 40, 72, 104
sLAY, sKV0, sPUB, sSC, sRET = 56, 64, 58, 59, 57
MLO, MHI = "s[60:61]", "s[62:63]"


def layernorm(p, x, t):
    s, q = t, t + 1
    p.e(f"v_add_f32 v{s}, v{x}, v{x + 1}\nv_mul_f32 v{q}, v{x}, v{x}")
    p.e(f"v_fmac_f32 v{q}, v{x + 1}, v{x + 1}")
    for i in range(2, 8):
        p.e(f"v_add_f32 v{s}, v{s}, v{x + i}\nv_fmac_f32 v{q}, v{x + i}, v{x + i}")
    for m in ("quad_perm:[1,0,3,2] row_mask:0xf", "quad_perm:[2,3,0,1] row_mask:0xf", "row_half_mirror row_mask:0xf",
              "row_mirror row_mask:0xf", "row_bcast:15 row_mask:0xa", "row_bcast:31 row_mask:0xc"):
        p.e(f"v_add_f32_dpp v{s}, v{s}, v{s} {m} bank_mask:0xf")
        p.e(f"v_add_f32_dpp v{q}, v{q}, v{q} {m} bank_mask:0xf")
    p.e(f"v_mul_f32 v{s}, 0x3b000000, v{s}\nv_mul_f32 v{q}, 0x3b000000, v{q}")
    p.e(f"v_fma_f32 v{q}, -v{s}, v{s}, v{q}\nv_max_f32 v{q}, 0, v{q}\nv_add_f32 v{q}, 0x3727c5ac, v{q}")
    p.e(f"v_rsq_f32 v{q}, v{q}")
    p.e(f"v_mul_f32_e64 v{s}, -v{s}, v{q}")
    p.e(f"v_readlane_b32 s68, v{q}, 63\nv_readlane_b32 s69, v{s}, 63")
    p.e(f"v_mov_b32 v{s}, s69")


def wkv_reads(p):
    t = T
    p.e(f"v_lshrrev_b32 v{t}, 5, v0\nv_lshlrev_b32 v{t}, 4, v{t}")
    p.e(f"v_bfe_u32 v{t + 1}, v0, 4, 1\nv_lshl_add_u32 v{t}, v{t + 1}, 2, v{t}")
    p.e(f"v_bfe_u32 v{t + 1}, v0, 3, 1\nv_lshl_add_u32 v{t}, v{t + 1}, 3, v{t}")
    p.e(f"v_bfe_u32 v{t + 1}, v0, 2, 1\nv_add_u32 v{t}, v{t}, v{t + 1}")
    p.e(f"v_and_b32 v{t + 1}, 3, v0\nv_lshlrev_b32 v{t + 1}, 3, v{t + 1}\nv_lshl_add_u32 v{t}, v{t}, 5, v{t + 1}")
    p.e(f"s_lshl_b32 s6, s{sW}, 14\ns_add_u32 s6, s6, {WKV}\nv_add_u32 v{t}, s6, v{t}")
    for kb in range(8):
        for a in range(4):
            off = (64 * kb + 32 * (a >> 1) + 2 * (a & 1)) * 32
            p.e(f"ds_read_b64_tr_b16 {vr(S + 8 * kb + 2 * a, 2)}, v{t} offset:{off}")


def kv_loads(p, kt):
    so = f"s{sKV0 + (kt >> 1)}"
    im = (kt & 1) * 2048
    p.e(f"buffer_load_dwordx4 {vr(K + 4 * kt, 4)}, v{aK}, {WS}, {so} offen offset:{im} sc1")
    p.e(f"s_mov_b64 exec, {MLO}")
    p.e(f"buffer_load_dwordx4 {vr(V + 8 * kt, 4)}, v{aV}, {WS}, {so} offen offset:{im} sc1")
    p.e(f"buffer_load_dwordx4 {vr(V + 8 * kt + 4, 4)}, v{aV}, {WS}, {so} offen offset:{im + 1024} sc1")
    p.e("s_mov_b64 exec, -1")


def attention_wave():
    p = Prog("attn")
    p.stampreg = "v23"
    retry = Prog("retry")
    srd(p, 40, pX, 0x200000)
    p.e(f"v_lshlrev_b32 v{aQ}, 4, v0")
    p.e(f"s_lshl_b32 s6, s{sO}, 3\ns_add_u32 s6, s6, s{sW}\ns_lshl_b32 s70, s6, 10")
    p.e(f"buffer_load_dwordx4 {vr(Q, 4)}, v{aQ}, {SA}, s70 offen")
    p.e("s_mov_b32 s60, 0xffff\ns_mov_b32 s61, 0xffff\ns_mov_b32 s62, 0xffff0000\ns_mov_b32 s63, 0xffff0000")
    p.e(f"s_lshl_b32 s6, s{sO}, 9\ns_lshl_b32 s7, s{sW}, 8\ns_add_u32 s{sPUB}, s6, s7")
    p.e(f"s_cmp_eq_u32 s{sW}, 0\ns_cselect_b32 s{sSC}, {SCALE}, 1.0")
    p.e(f"s_cselect_b32 s44, s{pWK}, s{pWV}\ns_cselect_b32 s45, s{pWK + 1}, s{pWV + 1}\ns_mov_b32 s46, 0x4000\ns_mov_b32 s47, 0x20000")
    p.e(f"s_cmp_ge_u32 s{sW}, 2\ns_cbranch_scc1 L_a_nodma")
    p.begin_if("dma")
    p.e(f"s_lshl_b32 s6, s{sW}, 14\ns_add_u32 s6, s6, {WKV}")
    for i in range(4):
        p.e(f"s_add_u32 m0, s6, {i * 4096}\ns_mov_b32 s7, {i * 4096}")
        for j in range(4):
            p.e(f"buffer_load_dwordx4 v{aQ}, {SB}, s7 offen offset:{j * 1024} lds")
    p.e(f"v_mov_b32 v{O}, -1\nv_mov_b32 v{O + 1}, -1\nv_mov_b32 v{O + 2}, -1\nv_mov_b32 v{O + 3}, -1")
    p.e(f"s_add_u32 s7, s{sPUB}, {KV2}\ns_mov_b64 exec, 0xffff")
    p.e(f"buffer_store_dwordx4 {vr(O, 4)}, v{aQ}, {WS}, s7 offen sc1")
    p.e("s_mov_b64 exec, -1")
    p.end_if()
    p.label("L_a_nodma")
    t = T
    p.e(f"v_bfe_u32 v{t}, v0, 3, 2\nv_lshlrev_b32 v{aK}, 9, v{t}")
    p.e(f"v_lshrrev_b32 v{t}, 5, v0\nv_lshl_add_u32 v{aK}, v{t}, 7, v{aK}")
    p.e(f"v_and_b32 v{t + 1}, 7, v0\nv_lshl_add_u32 v{aK}, v{t + 1}, 4, v{aK}")
    p.e(f"v_and_b32 v{t + 1}, 31, v0\nv_lshlrev_b32 v{t + 2}, 4, v{t + 1}")
    p.e(f"v_lshl_add_u32 v{aV}, v{t}, 9, v{t + 2}\nv_add_u32 v{aV}, 256, v{aV}")
    p.e(f"v_mov_b32 v{IDX}, 0xdddd\nv_mov_b32 v{aZ}, 0")
    p.e(f"s_lshl_b32 s6, s{sW}, 11\ns_add_u32 s6, s6, {PB}\nv_add_u32 v{aP}, s6, v{aQ}")
    p.e(f"s_lshr_b32 s6, s{sW}, 2\ns_lshl_b32 s6, s6, 9\ns_and_b32 s7, s{sW}, 3\ns_lshl_b32 s7, s7, 2\ns_add_u32 s6, s6, s7\ns_add_u32 s6, s6, {LP}")
    p.e(f"v_add_u32 v{aL}, s6, v{t + 2}")
    p.e(f"v_and_b32 v{t + 1}, 27, v{t + 1}\nv_cmp_eq_u32 vcc, 16, v{t + 1}\nv_mov_b32 v{t + 1}, 0x3f803f80")
    p.e(f"v_cndmask_b32 v{V + 62}, 0, v{t + 1}, vcc")
    p.e(f"v_mov_b32 v{V + 63}, v{V + 62}")
    for i in range(16, 31):
        p.e(f"v_mov_b64 {vr(V + 2 * i, 2)}, {vr(V + 62, 2)}")
    p.waitall(vm=False)
    p.e(f"s_add_u32 s{sEP}, s{sEP}, 0x9e3779b1")
    p.e(f"s_mov_b32 s{sLAY}, 0\ns_add_u32 s{sPUB}, s{sPUB}, {KV1}")
    p.e(f"s_lshl_b32 s6, s{sW}, 14\ns_add_u32 s{sKV0}, s6, {KV1}")
    if OPT["stamps"]:
        p.e("v_mov_b32 v23, 0")
    stamp(p, 0)
    p.e(f"v_mov_b32 v{S}, 0\nv_mov_b32 v{S + 1}, 0\nv_mov_b32 v{S + 2}, 0\nv_mov_b32 v{S + 3}, 0")
    p.e(f"ds_write_b128 v{aZ}, {vr(S, 4)}")
    for i in range(4):
        p.e(f"v_lshlrev_b32 v{X + 2 * i}, 16, v{Q + i}\nv_and_b32 v{X + 2 * i + 1}, 0xffff0000, v{Q + i}")
    stamp(p, 1)
    p.e(f"s_cmp_ge_u32 s{sW}, 2\ns_cbranch_scc1 L_a_layer")
    p.begin_if("wkv0")
    p.waitall()
    wkv_reads(p)
    p.end_if()
    p.q["vm"] = []
    p.label("L_a_layer")
    layernorm(p, X, T)
    for i in range(8):
        p.e(f"v_fma_f32 v{O + i}, v{X + i}, s68, v{T}")
    for i in range(4):
        p.e(f"v_cvt_pk_bf16_f32 v{Q + i}, v{O + 2 * i}, v{O + 2 * i + 1}")
    p.e(f"v_bfe_u32 v{t}, v0, 1, 2\nv_xor_b32 v{t + 1}, s{sW}, v{t}\nv_lshlrev_b32 v{t + 1}, 5, v{t + 1}")
    p.e(f"v_lshl_add_u32 v{t + 1}, v{t}, 8, v{t + 1}\nv_and_b32 v{t}, 1, v0\nv_lshl_add_u32 v{t + 1}, v{t}, 4, v{t + 1}")
    p.e(f"v_lshrrev_b32 v{t}, 3, v0\nv_lshl_add_u32 v{t + 1}, v{t}, 10, v{t + 1}")
    p.e(f"ds_write_b128 v{t + 1}, {vr(Q, 4)} offset:{XN}")
    p.waitall(vm=False)
    p.bar("XN")
    stamp(p, 2)
    p.e(f"s_cmp_ge_u32 s{sW}, 2\ns_cbranch_scc1 L_a_nokv")
    p.begin_if("kv")
    p.e(f"v_lshrrev_b32 v{t}, 4, v0\nv_lshlrev_b32 v{t + 1}, 5, v{t}\nv_xor_b32 v{t + 1}, v{t + 1}, v{aQ}")
    for kb in range(8):
        p.e(f"ds_read_b128 {vr(V + 4 * kb, 4)}, v{t + 1} offset:{XN + kb * 1024}")
    p.e(f"v_and_b32 v{t + 2}, 1, v0\nv_mul_u32_u24 v{t + 2}, 0xaaaa, v{t + 2}\nv_add_u32 v{t + 2}, 0x4444, v{t + 2}")
    p.e(f"v_mov_b32 v{O}, 0\nv_mov_b32 v{O + 1}, 0\nv_mov_b32 v{O + 2}, 0\nv_mov_b32 v{O + 3}, 0")
    p.e(f"v_bfe_u32 v{O + 4}, v0, 3, 1\nv_lshlrev_b32 v{O + 4}, 7, v{O + 4}\nv_lshl_add_u32 v{O + 4}, v{t}, 5, v{O + 4}")
    p.e(f"v_and_b32 v{O + 5}, 7, v0\nv_lshl_add_u32 v{O + 4}, v{O + 5}, 1, v{O + 4}\nv_add_u32 v{O + 5}, 16, v{O + 4}")
    p.e(f"s_cmp_eq_u32 s{sW}, 0\ns_cbranch_scc1 L_a_isk")
    p.e(f"v_and_b32 v{O + 4}, 15, v0\nv_lshlrev_b32 v{O + 4}, 4, v{O + 4}\nv_lshl_add_u32 v{O + 4}, v{t}, 2, v{O + 4}")
    p.e(f"v_add_u32 v{O + 4}, 256, v{O + 4}\nv_add_u32 v{O + 5}, 2, v{O + 4}")
    p.label("L_a_isk")
    p.e(f"s_lshl_b32 s6, s{sW}, 8\nv_add_u32 v{O + 6}, s6, v{aQ}")
    for kb in range(8):
        p.e(f"v_smfmac_f32_16x16x64_bf16 {vr(O, 4)}, {vr(V + 4 * kb, 4)}, {vr(S + 8 * kb, 8)}, v{t + 2}")
    p.e(f"v_add_f32 v{O}, v{O}, v{O + 1}\nv_add_f32 v{O + 2}, v{O + 2}, v{O + 3}")
    p.e(f"v_mul_f32 v{O}, s{sSC}, v{O}\nv_mul_f32 v{O + 2}, s{sSC}, v{O + 2}")
    p.e(f"v_cvt_pk_bf16_f32 v{O}, v{O}, v{O + 2}")
    p.e(f"ds_write_b16 v{O + 4}, v{O} offset:{KVST}\nds_write_b16_d16_hi v{O + 5}, v{O} offset:{KVST}")
    p.e("s_mov_b64 exec, 0xffff")
    p.e(f"ds_read_b128 {vr(Q, 4)}, v{O + 6} offset:{KVST}")
    p.e(f"buffer_store_dwordx4 {vr(Q, 4)}, v{aQ}, {WS}, s{sPUB} offen sc1")
    p.e("s_mov_b64 exec, -1")
    p.end_if()
    p.label("L_a_nokv")
    stamp(p, 3)
    p.e(f"s_mov_b64 exec, {MHI}")
    for i in range(16):
        p.e(f"v_mov_b64 {vr(V + 2 * i, 2)}, {vr(V + 62, 2)}")
    p.e("s_mov_b64 exec, -1")
    for i in range(8):
        p.e(f"v_mov_b64 {vr(O + 2 * i, 2)}, 0")
    for i in range(1, 4):
        p.e(f"s_add_u32 s{sKV0 + i}, s{sKV0}, {i * 4096}")
    p.e(f"s_mov_b32 s{sRET}, {SPIN}")
    p.waitall()
    p.e(f"s_cmp_lg_u32 s{sLAY}, 0\ns_cbranch_scc1 L_a_l2sync")
    p.e(f"s_cmp_ge_u32 s{sW}, 2\ns_cbranch_scc1 L_a_noflag")
    p.e(f"s_lshl_b32 s6, s{sO}, 1\ns_add_u32 s6, s6, s{sW}\ns_lshl_b32 s6, s6, 2\ns_add_u32 s6, s6, {FLAG1}")
    p.e(f"v_mov_b32 v{t}, s{sEP}\ns_mov_b64 exec, 1")
    p.e(f"buffer_store_dword v{t}, v{aZ}, {WS}, s6 offen sc1")
    p.e("s_mov_b64 exec, -1")
    p.label("L_a_noflag")
    p.e(f"v_lshlrev_b32 v{t}, 2, v0\ns_lshl_b32 s71, s{sW}, 8\ns_add_u32 s71, s71, {FLAG1}")
    poll(p, "a_f1", f"buffer_load_dword v{t + 1}, v{t}, {WS}, s71 offen sc1", [t + 1], 72)
    p.e("s_branch L_a_ld")
    p.label("L_a_l2sync")
    p.e("s_barrier")
    p.label("L_a_ld")
    stamp(p, 4)
    for kt in range(8):
        kv_loads(p, kt)
    p.e(f"s_cmp_lg_u32 s{sLAY}, 0\ns_cbranch_scc1 L_a_go")
    p.e("s_barrier ; Q0(layer 1)")
    p.label("L_a_go")
    p.bars.append("Q0")
    p.e(f"ds_read_b128 {vr(Q, 4)}, v{aQ} offset:{QF}")

    def check(kt):
        p.e(f"v_max3_u32 v{T}, v{K + 4 * kt}, v{V + 8 * kt}, v{V + 8 * kt + 4}")
        p.e(f"v_cmp_eq_u32 vcc, -1, v{T}")
        p.e(f"s_cbranch_vccnz L_a_retry{kt}")
        p.label(f"L_a_back{kt}")
        r = retry
        r.label(f"L_a_retry{kt}")
        r.e(f"s_sub_u32 s{sRET}, s{sRET}, 1\ns_cmp_lt_i32 s{sRET}, 0\ns_cbranch_scc1 L_a_back{kt}")
        r.e("s_sleep 6")
        kv_loads(r, kt)
        r.waitall(lg=False)
        r.e(f"v_max3_u32 v{T}, v{K + 4 * kt}, v{V + 8 * kt}, v{V + 8 * kt + 4}")
        r.e(f"v_cmp_eq_u32 vcc, -1, v{T}")
        r.e(f"s_cbranch_vccnz L_a_retry{kt}\ns_branch L_a_back{kt}")

    def Sb(i):
        return S + 16 * (i & 1)

    def qk(kt):
        p.e(f"v_mfma_f32_32x32x16_bf16 {vr(Sb(kt), 16)}, {vr(K + 4 * kt, 4)}, {vr(Q, 4)}, 0")

    def pv(kt, s):
        p.e(f"v_smfmac_f32_32x32x32_bf16 {vr(O, 16)}, {vr(V + 8 * kt + 4 * s, 4)}, {vr(Sb(kt) + 8 * s, 8)}, v{IDX}")

    def put_partial():
        p.e(f"ds_write_b128 v{aP}, {vr(O, 4)}\nds_write_b128 v{aP}, {vr(O + 4, 4)} offset:1024\nds_write_b32 v{aL}, v{O + 8}")

    check(0)
    qk(0)
    stamp(p, 5)
    for j in range(8):
        for kt in range(8):
            first = j > 0 and kt == 0
            second = j > 0 and kt == 1
            last = j == 7 and kt == 7
            for e in range(16):
                p.e(f"v_exp_f32 v{Sb(kt) + e}, v{Sb(kt) + e}")
                if second:
                    if e == 1: pv(0, 0)
                    if e == 4: pv(0, 1)
                    if e == 4: p.e("s_setprio 0")
                    if e == 7: qk(2)
                    if e == 11: pv(1, 0)
                    continue
                if e == 1 and not (j == 0 and kt == 0): pv((kt - 1) % 8, 1)
                if e == 4 and not last:
                    if j == 0 and kt < 7: check(kt + 1)
                    qk((kt + 1) % 8)
                    if kt == 6 and j < 7:
                        p.e(f"ds_read_b128 {vr(Q, 4)}, v{aQ} offset:{QF + (j + 1) * 1024}")
                if e == 9 and not first: pv(kt, 0)
                if e == 8 and first:
                    put_partial()
                    p.e(f"ds_read_b128 {vr(O, 4)}, v{aZ}\nds_read_b128 {vr(O + 4, 4)}, v{aZ}\nds_read_b32 v{O + 8}, v{aZ}")
            if second:
                p.bar(f"Y{j}")
            if kt == 5:
                p.bar(f"X{j}")
                p.e("s_setprio 1")
    pv(7, 1)
    put_partial()
    p.waitall(vm=False)
    p.e("s_setprio 0")
    p.bar("Y8")
    stamp(p, 6)
    Yr = O
    for i in range(8):
        p.e(f"v_mov_b32 v{Yr + i}, 0")
    p.e(f"s_lshl_b32 s6, s{sW}, 1\nv_add_u32 v{t}, s6, v{aQ}")
    for i in range(8):
        p.e(f"ds_read_u16_d16_hi v{Yr + i}, v{t} offset:{YB + i * 1024}")
    p.e(f"s_cmp_ge_u32 s{sW}, 2\ns_cbranch_scc1 L_a_nowkv")
    p.begin_if("wkv1")
    wkv_reads(p)
    p.end_if()
    p.label("L_a_nowkv")
    p.e(f"s_mul_i32 s6, s{sW}, {RS}\ns_add_u32 s6, s6, {PB}\nv_lshlrev_b32 v{t + 2}, 5, v0\nv_add_u32 v{t + 2}, s6, v{t + 2}")
    p.waitall(vm=False)
    p.bar("X8")
    p.bar("OUT")
    p.e(f"ds_read_b128 {vr(O + 8, 4)}, v{t + 2}\nds_read_b128 {vr(O + 12, 4)}, v{t + 2} offset:16")
    stamp(p, 7)
    for i in range(8):
        p.e(f"v_add_f32 v{X + i}, v{X + i}, v{O + 8 + i}")
    layernorm(p, X, T)
    for i in range(8):
        p.e(f"v_fma_f32 v{O + 8 + i}, v{X + i}, s68, v{T}")
    for i in range(8):
        p.e(f"v_fmac_f32 v{X + i}, v{O + 8 + i}, v{Yr + i}")
    p.e(f"s_cmp_lg_u32 s{sLAY}, 0\ns_cbranch_scc1 L_a_final")
    p.e(f"s_mov_b32 s{sLAY}, 1\ns_add_u32 s{sPUB}, s{sPUB}, {KV2 - KV1}\ns_add_u32 s{sKV0}, s{sKV0}, {KV2 - KV1}")
    if OPT["stamps"]:
        p.e("s_nop 1\nv_mov_b32_dpp v22, v23 row_shr:8 row_mask:0xf bank_mask:0xf\ns_mov_b64 exec, 0xff00\nv_mov_b32 v23, v22\ns_mov_b64 exec, -1")
    p.e("s_branch L_a_layer")
    p.label("L_a_final")
    for i in range(4):
        p.e(f"v_cvt_pk_bf16_f32 v{Q + i}, v{X + 2 * i}, v{X + 2 * i + 1}")
    srd(p, 40, pOUT, 0x200000)
    p.e(f"buffer_store_dwordx4 {vr(Q, 4)}, v{aQ}, {SA}, s70 offen")
    p.e(f"s_or_b32 s6, s{sO}, s{sW}\ns_cmp_lg_u32 s6, 0\ns_cbranch_scc1 L_a_end")
    p.e(f"v_mov_b32 v{t}, s{sEP}\ns_mov_b64 exec, 1")
    p.e(f"buffer_store_dword v{t}, v{aZ}, {WS}, 0 offen")
    p.e("s_mov_b64 exec, -1")
    p.label("L_a_end")
    stamp(p, 0)
    stamp_flush(p)
    p.e("s_endpgm")
    p.ins += retry.ins
    return p


hW, hIDX, hXN, hQW, hPR, hLR, hOW, hMX, hH, hU, hZ = 1, 2, 3, 4, 5, 6, 7, 9, 10, 11, 15
hT0 = 12
OACC, QACC, AF, HT, SACC, RING = 16, 48, 52, 60, 84, 116
sH, sHB, sD, sSO = 56, 57, 58, 59


class Stream:
    def __init__(self, p, frags, slots):
        self.p, self.frags, self.free = p, frags, list(slots)
        self.next_issue = 0
        self.inflight = []
        self.cur_so = None

    def pump(self, maxn=99):
        n = 0
        while self.free and self.next_issue < len(self.frags) and n < maxn:
            off = self.frags[self.next_issue]
            slot = self.free.pop(0)
            base = off & ~4095
            if base != self.cur_so:
                self.p.e(f"s_add_u32 s{sSO}, s{sHB}, {base}")
                self.cur_so = base
            for J in range(2):
                self.p.e(f"buffer_load_dwordx4 {vr(slot + 4 * J, 4)}, v{hW}, {WS}, s{sSO} offen offset:{(off & 4095) + J * 1024} sc1")
            self.inflight.append(slot)
            self.next_issue += 1
            n += 1

    def take(self):
        return self.inflight.pop(0)

    def release(self, slot):
        self.free.append(slot)
        self.pump()


def helper_wave():
    p = Prog("help")
    p.stampreg = "v8"
    slow = Prog("hslow")
    t = hT0
    p.label("L_helper")
    p.e("s_setprio 3")
    p.e(f"s_sub_u32 s{sH}, s{sW}, 8\ns_lshl_b32 s{sHB}, s{sH}, 14")
    p.e(f"v_lshlrev_b32 v{hW}, 4, v0\nv_mov_b32 v{hZ}, 0")
    G = 16
    p.e(f"s_cmp_lt_u32 s{sH}, 2")
    p.e(f"s_cselect_b32 s40, s{pWQ}, s{pWO}\ns_cselect_b32 s41, s{pWQ + 1}, s{pWO + 1}\ns_mov_b32 s42, 0x80000\ns_mov_b32 s43, 0x20000")
    p.e(f"v_and_b32 v{t}, 15, v0\nv_lshrrev_b32 v{t + 1}, 4, v0")
    p.e("s_cbranch_scc0 L_h_swo")
    p.e(f"v_lshrrev_b32 v{t + 2}, 5, v0\nv_lshlrev_b32 v24, 14, v{t + 2}\nv_and_b32 v{t + 2}, 1, v{t + 1}")
    p.e(f"v_lshl_add_u32 v24, v{t + 2}, 12, v24\nv_lshl_add_u32 v24, v{t}, 1, v24\nv_mov_b32 v25, v{hW}")
    p.e(f"s_and_b32 s6, s{sO}, 7\ns_lshl_b32 s6, s6, 16\ns_lshl_b32 s7, s{sH}, 15\ns_add_u32 s60, s6, s7")
    p.e(f"s_lshr_b32 s6, s{sO}, 3\ns_lshl_b32 s6, s6, 5\ns_add_u32 s60, s60, s6\ns_add_u32 s61, s60, 8192")
    p.e(f"s_lshl_b32 s6, s{sO}, 1\ns_add_u32 s6, s6, s{sH}\ns_lshl_b32 s6, s6, 10\ns_add_u32 s62, s6, {WQS}")
    p.e("s_branch L_h_swgo")
    p.label("L_h_swo")
    p.e(f"v_lshlrev_b32 v24, 4, v{t}\nv_lshl_add_u32 v24, v{t + 1}, 1, v24")
    p.e(f"v_lshlrev_b32 v25, 4, v{t}\nv_lshl_add_u32 v25, v{t + 1}, 11, v25")
    p.e(f"s_lshr_b32 s6, s{sO}, 5\ns_lshl_b32 s60, s6, 16\ns_and_b32 s7, s{sO}, 7\ns_lshl_b32 s7, s7, 13\ns_add_u32 s60, s60, s7")
    p.e(f"s_bfe_u32 s63, s{sO}, 0x20003\ns_lshl_b32 s7, s63, 8\ns_add_u32 s60, s60, s7")
    p.e(f"s_and_b32 s64, s{sH}, 1\ns_lshl_b32 s7, s64, 3\ns_add_u32 s60, s60, s7\ns_add_u32 s61, s60, 4096")
    p.e("s_lshl_b32 s62, s6, 16\ns_lshl_b32 s7, s63, 14\ns_add_u32 s62, s62, s7\ns_lshl_b32 s7, s64, 13\ns_add_u32 s62, s62, s7")
    p.e(f"s_and_b32 s7, s{sO}, 7\ns_lshl_b32 s7, s7, 8\ns_add_u32 s62, s62, s7\ns_add_u32 s62, s62, {WOS}")
    p.label("L_h_swgo")
    for j in range(4):
        for e in range(2):
            p.e(f"buffer_load_ushort v{G + 2 * j + e}, v24, {SA}, s{60 + (j & 1)} offen offset:{(2 * (j >> 1) + e) * 1024}")
    KR, VR, SH = 32, 44, 52
    srd(p, 44, pBK, 0x200000)
    srd(p, 48, pBV, 0x200000)
    srd(p, 52, pSH, 0x1000)
    p.e(f"v_lshrrev_b32 v{t}, 3, v0\nv_and_b32 v{t + 1}, 7, v0")
    p.e(f"v_lshlrev_b32 v26, 13, v{t}\nv_lshl_add_u32 v26, v{t + 1}, 2, v26")
    p.e(f"s_and_b32 s65, s{sO}, 31\ns_lshr_b32 s66, s{sO}, 5")
    p.e(f"s_lshl_b32 s6, s65, 16\ns_lshl_b32 s7, s66, 7\ns_add_u32 s6, s6, s7\ns_lshl_b32 s7, s{sH}, 5\ns_add_u32 s67, s6, s7\ns_add_u32 s68, s67, 4096")
    p.e("s_sub_u32 s6, s67, 3072\nv_add_u32 v27, s6, v26")
    p.e(f"s_lshl_b32 s6, s66, 9\ns_lshl_b32 s7, s{sH}, 7\ns_add_u32 s69, s6, s7\nv_lshlrev_b32 v28, 4, v{t + 1}")
    p.e(f"buffer_load_dwordx4 {vr(SH, 4)}, v28, s[52:55], s69 offen")
    for r in range(3):
        p.e(f"buffer_load_dword v{KR + r}, v27, {SB}, 0 offen offset:{r * 1024}")
    for r in range(8):
        p.e(f"buffer_load_dword v{KR + 3 + r}, v26, {SB}, s{67 + (r >> 2)} offen offset:{(r & 3) * 1024}")
    for r in range(8):
        p.e(f"buffer_load_dword v{VR + r}, v26, {SC}, s{67 + (r >> 2)} offen offset:{(r & 3) * 1024}")
    p.waitall(vm=False)
    p.e(f"s_add_u32 s{sEP}, s{sEP}, 0x9e3779b1")
    p.e(f"s_lshr_b32 s70, s{sH}, 1\ns_and_b32 s71, s{sH}, 1\ns_lshl_b32 s6, s{sO}, 1\ns_add_u32 s72, s6, s70")
    p.e(f"s_lshl_b32 s6, s{sO}, 2\ns_load_dword s{sD}, s[{pSD}:{pSD + 1}], s6")
    p.e(f"s_lshl_b32 s6, s72, 12\ns_add_u32 s52, s{pSK}, s6\ns_addc_u32 s53, s{pSK + 1}, 0\ns_mov_b32 s54, 0x1000")
    p.e(f"s_mul_i32 s73, s{sH}, {2 * CS}\ns_add_u32 s73, s73, {HB}")
    for ce in range(2):
        p.e(f"s_add_u32 m0, s73, {ce * CS + 64}\ns_lshl_b32 s6, s71, 2\ns_add_u32 s6, s6, {2 * ce}")
        for i in range(4):
            p.e(f"buffer_load_dwordx4 v{hW}, s[52:55], s6 offen offset:{i * 1024} lds")
    p.e(f"v_lshrrev_b32 v29, 5, v0\nv_and_b32 v30, 31, v0\nv_add_u32 v31, v29, v30")
    p.e("s_lshl_b32 s6, s71, 1\ns_sub_u32 s6, s6, 32\nv_add_u32 v31, s6, v31\nv_lshlrev_b32 v31, 1, v31")
    p.e("buffer_load_ushort v31, v31, s[52:55], 0 offen")
    p.e(f"v_mul_u32_u24 v29, {CS}, v29\nv_lshl_add_u32 v29, v30, 1, v29\nv_add_u32 v29, s73, v29")
    p.waitall(vm=False)
    p.e(f"s_lshl_b32 s6, s{sD}, 16\ns_and_b32 s7, s{sD}, 0xffff0000\ns_cmp_eq_u32 s70, 0\ns_cselect_b32 s{sD}, s6, s7")
    if OPT["stamps"]:
        p.e("v_mov_b32 v8, 0")
    stamp(p, 0)
    p.e("v_mov_b32 v56, 0\nv_mov_b32 v57, 0\nv_mov_b32 v58, 0\nv_mov_b32 v59, 0")
    p.e(f"v_lshrrev_b32 v60, 5, v0\nv_mul_u32_u24 v60, 1536, v60\nv_lshl_add_u32 v60, v30, 4, v60")
    p.e(f"s_mul_i32 s74, s{sH}, 3072\ns_add_u32 s74, s74, {UB}\nv_add_u32 v60, s74, v60")
    p.e("ds_write_b128 v60, v[56:59] offset:1024")
    for j in range(4):
        p.e(f"v_lshl_or_b32 v{56 + j}, v{G + 2 * j + 1}, 16, v{G + 2 * j}")
    p.e(f"buffer_store_dwordx4 v[56:59], v25, {WS}, s62 offen sc1")
    stamp(p, 1)
    p.bar("XN")
    W, KU, U = 64, 72, 84
    for c in range(2):
        un = (lambda d, s: f"v_lshlrev_b32 v{d}, 16, v{s}") if c == 0 else (lambda d, s: f"v_and_b32 v{d}, 0xffff0000, v{s}")
        for j in range(2):
            p.e(f"v_lshlrev_b32 v{W + 2 * j}, 16, v{SH + 2 * c + j}\nv_and_b32 v{W + 2 * j + 1}, 0xffff0000, v{SH + 2 * c + j}")
        for r in range(11):
            p.e(un(KU + r, KR + r))
        for r in range(8):
            p.e(f"v_mul_f32 v{U + r}, v{W}, v{KU + 3 + r}")
            for j in range(1, 4):
                p.e(f"v_fmac_f32 v{U + r}, v{W + j}, v{KU + 3 + r - j}")
            p.e(un(W + 4, VR + r))
            p.e(f"v_mul_f32 v{U + r}, v{U + r}, v{W + 4}")
        for i in range(4):
            p.e(f"v_cvt_pk_bf16_f32 v{96 + 4 * c + i}, v{U + 7 - 2 * i}, v{U + 6 - 2 * i}")
    p.e(f"v_xor_b32 v60, 7, v{t}\nv_xor_b32 v60, v60, v{t + 1}\nv_lshlrev_b32 v60, 4, v60\nv_lshl_add_u32 v60, v{t + 1}, 8, v60")
    p.e(f"s_lshl_b32 s75, s{sH}, 12\ns_add_u32 s75, s75, {SX}\nv_add_u32 v60, s75, v60")
    p.e("ds_write_b128 v60, v[96:99]\nds_write_b128 v60, v[100:103] offset:128")
    p.e(f"v_lshrrev_b32 v61, 4, v0\nv_xor_b32 v61, v61, v{t + 1}\nv_lshlrev_b32 v61, 4, v61\nv_lshl_add_u32 v61, v{t}, 7, v61\nv_add_u32 v61, s75, v61")
    p.e("v_xor_b32 v62, 64, v61")
    p.e("ds_read_b128 v[96:99], v61\nds_read_b128 v[100:103], v62 offset:1024")
    p.e(f"v_lshlrev_b32 v63, 12, v{t}\nv_lshl_add_u32 v63, v{t + 1}, 4, v63")
    p.e(f"s_lshl_b32 s6, s66, 18\ns_lshl_b32 s7, s{sH}, 16\ns_add_u32 s6, s6, s7\ns_lshl_b32 s7, s65, 7\ns_sub_u32 s6, s6, s7\ns_add_u32 s6, s6, {UR + 3968}\ns_add_u32 s7, s6, 0x8000")
    p.e(f"buffer_store_dwordx4 v[96:99], v63, {WS}, s6 offen sc1")
    p.e(f"buffer_store_dwordx4 v[100:103], v63, {WS}, s7 offen sc1")
    p.e("ds_write_b16 v29, v31")
    p.e(f"v_and_b32 v{hIDX}, 1, v0\nv_mul_u32_u24 v{hIDX}, 0xaaaa, v{hIDX}\nv_add_u32 v{hIDX}, 0x4444, v{hIDX}")
    p.e(f"v_lshrrev_b32 v{t}, 4, v0\nv_lshlrev_b32 v{hXN}, 5, v{t}\nv_xor_b32 v{hXN}, v{hXN}, v{hW}")
    p.e(f"v_bfe_u32 v{hQW}, v0, 3, 1\nv_lshlrev_b32 v{hQW}, 9, v{hQW}\nv_lshl_add_u32 v{hQW}, v{t}, 5, v{hQW}")
    p.e(f"v_lshl_add_u32 v{hQW}, v{t + 1}, 1, v{hQW}\ns_lshl_b32 s6, s{sH}, 7\nv_add_u32 v{hQW}, s6, v{hQW}")
    p.e(f"s_lshl_b32 s6, s70, 10\ns_lshl_b32 s7, s71, 3\ns_add_u32 s6, s6, s7\ns_add_u32 s6, s6, {PB}\nv_add_u32 v{hPR}, s6, v{hW}")
    p.e(f"v_lshlrev_b32 v{hLR}, 4, v30")
    p.e(f"v_lshrrev_b32 v{t + 2}, 5, v0\nv_lshlrev_b32 v{hOW}, 5, v30\nv_lshl_add_u32 v{hOW}, v{t + 2}, 4, v{hOW}")
    p.e(f"s_lshl_b32 s6, s{sH}, 2\nv_add_u32 v{hOW}, s6, v{hOW}\nv_mov_b32 v{hMX}, 0")
    p.e(f"v_add_u32 v60, 1, v30\nv_and_b32 v61, 3, v60\nv_sub_u32 v60, v60, v61\nv_mul_u32_u24 v61, {CS}, v61")
    p.e(f"v_lshl_add_u32 v61, v60, 1, v61\nv_lshl_add_u32 v61, v{t + 2}, 4, v61")
    p.e(f"s_mul_i32 s6, s70, {4 * CS}\ns_lshl_b32 s7, s71, 10\ns_add_u32 s6, s6, s7\ns_add_u32 s6, s6, {HB}\nv_add_u32 v{hH}, s6, v61")
    p.e(f"v_sub_u32 v60, 31, v30\nv_lshlrev_b32 v60, 4, v60\nv_mul_u32_u24 v61, 1536, v{t + 2}\nv_add_u32 v60, v60, v61")
    p.e(f"s_mul_i32 s76, s70, 6144\ns_add_u32 s76, s76, {UB}\ns_lshl_b32 s7, s71, 8\ns_add_u32 s6, s76, s7\nv_add_u32 v{hU}, s6, v60")
    p.waitall()
    p.e(f"s_lshl_b32 s6, s{sO}, 2\ns_add_u32 s6, s6, s{sH}\ns_lshl_b32 s6, s6, 2\ns_add_u32 s6, s6, {FLAGH}")
    p.e(f"v_mov_b32 v60, s{sEP}\ns_mov_b64 exec, 1")
    p.e(f"buffer_store_dword v60, v{hZ}, {WS}, s6 offen sc1")
    p.e("s_mov_b64 exec, -1")
    stamp(p, 2)
    p.e(f"v_lshrrev_b32 v60, 3, v0\nv_lshlrev_b32 v60, 9, v60\nv_lshl_add_u32 v60, v{t + 1}, 4, v60")
    p.e(f"s_lshl_b32 s77, s{sH}, 7\ns_add_u32 s77, s77, {FLAGH}")
    poll(p, "h_fw", f"buffer_load_dwordx4 v[64:67], v60, {WS}, s77 offen sc1", [64, 65, 66, 67], 78)
    stamp(p, 3)

    frags = []
    for L in range(2):
        order = ["Q0", "Q1", "Q2", "O0", "Q3", "O1", "Q4", "O2", "Q5", "O3", "Q6", "O4", "Q7", "O5", "O6", "O7"]
        for nm in order:
            base = (WQS if nm[0] == "Q" else WOS) + int(nm[1]) * 65536
            frags += [base + i * 2048 for i in range(8)]
    st = Stream(p, frags, [RING + 8 * i for i in range(6)])
    st.pump()

    def qproj(tile):
        p.e(f"ds_read_b128 {vr(QACC, 4)}, v{hZ}")
        p.e(f"ds_read_b128 {vr(AF, 4)}, v{hXN} offset:{XN}")
        for kb in range(8):
            if kb < 7:
                p.e(f"ds_read_b128 {vr(AF + 4 * ((kb + 1) & 1), 4)}, v{hXN} offset:{XN + (kb + 1) * 1024}")
            s = st.take()
            p.e(f"v_smfmac_f32_16x16x64_bf16 {vr(QACC, 4)}, {vr(AF + 4 * (kb & 1), 4)}, {vr(s, 8)}, v{hIDX}")
            st.release(s)
        p.e(f"v_add_f32 v{t}, v{QACC}, v{QACC + 1}\nv_add_f32 v{t + 1}, v{QACC + 2}, v{QACC + 3}")
        p.e(f"v_cvt_pk_bf16_f32 v{t}, v{t}, v{t + 1}")
        p.e(f"ds_write_b16 v{hQW}, v{t} offset:{QF + tile * 1024}\nds_write_b16_d16_hi v{hQW}, v{t} offset:{QF + tile * 1024 + 16}")

    def reduce():
        a, L = HT, HT + 16
        p.e(f"ds_read_b128 {vr(L, 4)}, v{hLR} offset:{LP}\nds_read_b128 {vr(L + 4, 4)}, v{hLR} offset:{LP + 512}")
        for w in range(8):
            p.e(f"ds_read_b64 {vr(a + 2 * w, 2)}, v{hPR} offset:{w * 2048}")
        for i in range(1, 8):
            p.e(f"v_add_f32 v{L}, v{L}, v{L + i}")
        p.e(f"v_rcp_f32 v{L + 1}, v{L}")
        for w in range(1, 8):
            p.e(f"v_add_f32 v{a}, v{a}, v{a + 2 * w}\nv_add_f32 v{a + 1}, v{a + 1}, v{a + 2 * w + 1}")
        p.e(f"v_max3_f32 v{hMX}, v{hMX}, v{L}, v{L + 1}")
        p.e(f"v_mul_f32 v{a}, v{a}, v{L + 1}\nv_mul_f32 v{a + 1}, v{a + 1}, v{L + 1}")
        p.e(f"v_cvt_pk_bf16_f32 v{a}, v{a}, v{a + 1}")
        p.e(f"ds_write_b32 v{hOW}, v{a} offset:{OA}")

    def oproj():
        p.e(f"ds_read_b128 {vr(AF, 4)}, v{hW} offset:{OA}")
        for ct in range(8):
            s = st.take()
            p.e(f"v_smfmac_f32_16x16x64_bf16 {vr(OACC + 4 * ct, 4)}, {vr(AF, 4)}, {vr(s, 8)}, v{hIDX}")
            st.release(s)

    def ssm(i0, n):
        Al, Ah, B0, B1 = HT, HT + 4, HT + 8, HT + 12
        D0, D1 = SACC, SACC + 16
        for i in range(i0, i0 + n):
            b8 = 2 * i - 4
            boff = (b8 & 3) * 1536 + ((b8 >> 2) + 1) * 16
            p.e(f"ds_read_b64 {vr(Al, 2)}, v{hH} offset:{32 * i}\nds_read_b64 {vr(Al + 2, 2)}, v{hH} offset:{32 * i + 8}")
            p.e(f"ds_read_b128 {vr(B0, 4)}, v{hU} offset:{boff + 512}")
            p.e(f"ds_read_b128 {vr(B1, 4)}, v{hU} offset:{boff}")
            p.e(f"ds_read_b64 {vr(Ah, 2)}, v{hH} offset:{32 * i + 2048}\nds_read_b64 {vr(Ah + 2, 2)}, v{hH} offset:{32 * i + 2056}")
            c0 = vr(D0, 16) if i else "0"
            c1 = vr(D1, 16) if i else "0"
            p.e(f"v_mfma_f32_32x32x16_bf16 {vr(D0, 16)}, {vr(Al, 4)}, {vr(B0, 4)}, {c0}")
            p.e(f"v_mfma_f32_32x32x16_bf16 {vr(D1, 16)}, {vr(Al, 4)}, {vr(B1, 4)}, {c1}")
            p.e(f"v_mfma_f32_32x32x16_bf16 {vr(D1, 16)}, {vr(Ah, 4)}, {vr(B0, 4)}, {vr(D1, 16)}")

    def ssm_send():
        p.e(f"v_add_u32 v{t}, s75, v{hW}")
        p.e("s_nop 7\ns_nop 3")
        p.waitall(vm=False)
        p.e("s_cmp_eq_u32 s71, 0\ns_cbranch_scc1 L_h_s0")
        for i in range(4):
            p.e(f"ds_write_b128 v{t}, {vr(SACC + 4 * i, 4)} offset:{i * 1024}")
        p.e("s_branch L_h_s1")
        p.label("L_h_s0")
        for i in range(4):
            p.e(f"ds_write_b128 v{t}, {vr(SACC + 16 + 4 * i, 4)} offset:{i * 1024}")
        p.label("L_h_s1")
        p.waitall(vm=False)

    def ssm_finish():
        R = HT
        p.e(f"s_xor_b32 s6, s75, 0x1000\nv_add_u32 v{t}, s6, v{hW}")
        for i in range(4):
            p.e(f"ds_read_b128 {vr(R + 4 * i, 4)}, v{t} offset:{i * 1024}")
        p.e(f"v_and_b32 v{t + 1}, 31, v0\nv_lshrrev_b32 v{t + 2}, 5, v0\nv_lshlrev_b32 v164, 4, v{t + 1}\nv_lshl_add_u32 v164, v{t + 2}, 3, v164")
        p.e(f"s_lshl_b32 s7, s71, 9\ns_sub_u32 s7, s76, s7\ns_add_u32 s7, s7, {63 * 16 + 8}\nv_sub_u32 v164, s7, v164")
        for b in range(4):
            p.e(f"ds_read_b64 {vr(R + 16 + 2 * b, 2)}, v164 offset:{(3 - b) * 1536}")
        p.waitall(vm=False)
        p.e("s_cmp_eq_u32 s71, 0\ns_cbranch_scc1 L_h_f0")
        for i in range(16):
            p.e(f"v_add_f32 v{R + i}, v{R + i}, v{SACC + 16 + i}")
        p.e("s_branch L_h_f1")
        p.label("L_h_f0")
        for i in range(16):
            p.e(f"v_add_f32 v{R + i}, v{R + i}, v{SACC + i}")
        p.label("L_h_f1")
        for b in range(4):
            u0, u1 = R + 16 + 2 * b, R + 17 + 2 * b
            p.e(f"v_and_b32 v165, 0xffff0000, v{u1}\nv_fmac_f32 v{R + 4 * b}, s{sD}, v165")
            p.e(f"v_lshlrev_b32 v165, 16, v{u1}\nv_fmac_f32 v{R + 4 * b + 1}, s{sD}, v165")
            p.e(f"v_and_b32 v165, 0xffff0000, v{u0}\nv_fmac_f32 v{R + 4 * b + 2}, s{sD}, v165")
            p.e(f"v_lshlrev_b32 v165, 16, v{u0}\nv_fmac_f32 v{R + 4 * b + 3}, s{sD}, v165")
            p.e(f"v_cvt_pk_bf16_f32 v{R + 4 * b}, v{R + 4 * b}, v{R + 4 * b + 1}\nv_cvt_pk_bf16_f32 v{R + 4 * b + 1}, v{R + 4 * b + 2}, v{R + 4 * b + 3}")
        p.e(f"v_mul_u32_u24 v164, 80, v{t + 1}\nv_lshl_add_u32 v164, v{t + 2}, 3, v164\nv_add_u32 v164, s6, v164")
        for b in range(4):
            p.e(f"ds_write_b64 v164, {vr(R + 4 * b, 2)} offset:{b * 16}")
        p.e("v_lshrrev_b32 v164, 2, v0\nv_mul_u32_u24 v164, 80, v164\nv_and_b32 v165, 3, v0\nv_lshl_add_u32 v164, v165, 4, v164\nv_add_u32 v164, s6, v164")
        p.e(f"ds_read_b128 {vr(R, 4)}, v164\nds_read_b128 {vr(R + 4, 4)}, v164 offset:1280")
        p.e(f"s_lshl_b32 s6, s72, 12\ns_lshl_b32 s7, s71, 11\ns_add_u32 s6, s6, s7\ns_add_u32 s6, s6, {YT}")
        p.e(f"buffer_store_dwordx4 {vr(R, 4)}, v{hW}, {WS}, s6 offen sc1")
        return p.e(f"buffer_store_dwordx4 {vr(R + 4, 4)}, v{hW}, {WS}, s6 offen offset:1024 sc1")

    def checked(name, load, regs):
        for i, r in enumerate(regs):
            if i == 0:
                p.e(f"v_cmp_ne_u32 vcc, s{sEP}, v{r}")
            else:
                p.e(f"v_cmp_ne_u32 s[6:7], s{sEP}, v{r}\ns_or_b64 vcc, vcc, s[6:7]")
        p.e(f"s_cbranch_vccnz L_{name}_slow")
        p.label(f"L_{name}_back")
        slow.label(f"L_{name}_slow")
        poll(slow, name, load, regs, 78)
        slow.e(f"s_branch L_{name}_back")

    def sync(name):
        p.waitall(vm=False)
        p.bar(name)

    for L in range(2):
        for i in range(16):
            p.e(f"v_mov_b64 {vr(OACC + 2 * i, 2)}, 0")
        if L == 0:
            p.e(f"s_lshl_b32 s6, s66, 9\ns_bfe_u32 s7, s{sO}, 0x20003\ns_lshl_b32 s7, s7, 2\ns_add_u32 s6, s6, s7\ns_add_u32 s79, s6, {FLAGH}")
            uload = f"buffer_load_dword v164, v{hLR}, {WS}, s79 offen sc1"
            p.e(uload)
        qproj(0)
        stamp(p, 4 + 8 * L)
        sync("Q0")
        if L == 0:
            checked("h_fu", uload, [164])
            p.e(f"v_lshlrev_b32 v165, 6, v0\ns_lshl_b32 s6, s72, 12\ns_lshl_b32 s7, s71, 5\ns_add_u32 s6, s6, s7\ns_add_u32 s6, s6, {UR}\ns_add_u32 s7, s6, 16")
            p.e(f"s_mov_b32 m0, s74")
            p.e(f"buffer_load_dwordx4 v165, {WS}, s6 offen sc1 lds")
            p.e(f"s_add_u32 m0, s74, 1536")
            utok = p.e(f"buffer_load_dwordx4 v165, {WS}, s7 offen sc1 lds")
        qproj(1)
        if L == 0:
            p.wait(utok)
        sync("X0")
        if L == 0:
            ssm(0, 4)
        sync("Y1")
        for j in range(1, 8):
            reduce()
            if j < 7:
                qproj(j + 1)
            if L == 0 and j <= 4:
                ssm(8 * j - 4, 4)
            if L == 0 and j == 4:
                ssm_send()
            if L == 0 and j == 5:
                p.wait(ytok)
                p.e(f"s_and_b32 s6, s72, 7\ns_lshl_b32 s6, s6, 8\ns_lshr_b32 s7, s72, 3\ns_lshl_b32 s7, s7, 2\ns_add_u32 s6, s6, s7")
                p.e(f"s_lshl_b32 s7, s71, 11\ns_add_u32 s6, s6, s7\ns_add_u32 s6, s6, {FLAG2}")
                p.e(f"v_mov_b32 v164, s{sEP}\ns_mov_b64 exec, 1")
                p.e(f"buffer_store_dword v164, v{hZ}, {WS}, s6 offen sc1")
                p.e("s_mov_b64 exec, -1")
            if L == 0 and j == 7:
                checked("h_fy", yload, [164, 165])
                p.e(f"v_lshlrev_b32 v166, 15, v0\ns_lshl_b32 s6, s{sH}, 13\ns_lshl_b32 s7, s{sO}, 4\ns_add_u32 s6, s6, s7\ns_add_u32 s6, s6, {YT}\ns_add_u32 s7, s6, 4096")
                p.e(f"s_lshl_b32 s80, s{sH}, 11\ns_add_u32 m0, s80, {YB}")
                p.e(f"buffer_load_dwordx4 v166, {WS}, s6 offen sc1 lds")
                p.e(f"s_add_u32 m0, s80, {YB + 1024}")
                gtok = p.e(f"buffer_load_dwordx4 v166, {WS}, s7 offen sc1 lds")
            sync(f"X{j}")
            oproj()
            if L == 0 and j <= 3:
                ssm(8 * j, 4)
            if L == 0 and j == 4:
                ytok = ssm_finish()
                st.free += [SACC + 8 * i for i in range(4)]
                st.pump()
            if L == 0 and j == 6:
                p.e(f"v_lshlrev_b32 v167, 2, v0\ns_lshr_b32 s6, s{sO}, 7\ns_lshl_b32 s6, s6, 11\ns_lshl_b32 s7, s{sH}, 9\ns_add_u32 s6, s6, s7\ns_add_u32 s79, s6, {FLAG2}")
                yload = f"buffer_load_dword v164, v167, {WS}, s79 offen sc1\nbuffer_load_dword v165, v167, {WS}, s79 offen offset:256 sc1"
                p.e(yload)
            if L == 0 and j == 7:
                p.wait(gtok)
            sync(f"Y{j + 1}")
        stamp(p, 5 + 8 * L)
        reduce()
        p.e(f"v_lshrrev_b32 v{t}, 4, v0\nv_mul_u32_u24 v{t}, {2 * RS}, v{t}\nv_and_b32 v{t + 1}, 15, v0\nv_lshl_add_u32 v{t}, v{t + 1}, 5, v{t}")
        p.e(f"s_lshl_b32 s6, s{sH}, 9\ns_add_u32 s6, s6, {PB}\nv_add_u32 v{t}, s6, v{t}")
        sync("X8")
        oproj()
        for ct in range(8):
            p.e(f"v_add_f32 v{HT + ct}, v{OACC + 4 * ct}, v{OACC + 4 * ct + 1}\nv_add_f32 v{HT + 8 + ct}, v{OACC + 4 * ct + 2}, v{OACC + 4 * ct + 3}")
        p.e(f"ds_write_b128 v{t}, {vr(HT, 4)}\nds_write_b128 v{t}, {vr(HT + 4, 4)} offset:16")
        p.e(f"ds_write_b128 v{t}, {vr(HT + 8, 4)} offset:{RS}\nds_write_b128 v{t}, {vr(HT + 12, 4)} offset:{RS + 16}")
        stamp(p, 6 + 8 * L)
        sync("OUT")
        if L == 0:
            p.bar("XN")
    stamp_flush(p)
    p.e("s_endpgm")
    p.ins += slow.ins
    return p


def main():
    ref = open(f"cdna_kernels/{NAME}.s.ref").read()
    head = [l for l in ref.split("\n") if l.startswith(";") and "@launch" not in l]
    pro, att, hel = prologue(), attention_wave(), helper_wave()
    assert att.bars + att.bars == hel.bars, (att.bars, hel.bars)
    out = "\n".join(head) + f"\n; @launch grid=(256,1,1) block=(768,1,1) lds={LDS_SIZE}\n"
    out += f""".amdgcn_target "amdgcn-amd-amdhsa--gfx950"
.text
.globl {NAME}_kernel
.p2align 8
.type {NAME}_kernel,@function
{NAME}_kernel:
"""
    out += pro.text() + att.text() + hel.text() + "L_exit:\n    s_endpgm\n"
    out += f""".section .rodata,"a"
.p2align 6
.amdhsa_kernel {NAME}_kernel
  .amdhsa_next_free_vgpr 168
  .amdhsa_next_free_sgpr 96
  .amdhsa_accum_offset 168
  .amdhsa_group_segment_fixed_size 0
  .amdhsa_kernarg_size 112
  .amdhsa_user_sgpr_count 2
  .amdhsa_user_sgpr_kernarg_segment_ptr 1
  .amdhsa_system_sgpr_workgroup_id_x 1
.end_amdhsa_kernel
"""
    open(sys.argv[1], "w").write(out)
    print("nops added:", pro.nops_added, att.nops_added, hel.nops_added, "instr:", len(att.ins), len(hel.ins))


main()
```

```python
import sys, os
sys.path.insert(0, os.path.dirname(os.path.abspath(__file__)))
from asmlib import Prog

NAME = "interleave_layers__grouped_kv_mqa__ssm_conv_h3__prompt"
OPT = dict(stamps=0)
for a in sys.argv[2:]:
    k, v = a.split("=")
    OPT[k] = int(v)

EPOCH = 0
FLAG1 = 0x50000
FLAGH = 0x70000
FLAG2 = 0x80000
KV1 = 0x10000
KV2 = 0x30000
WQS = 0x100000
WOS = 0x180000
UR = 0x200000
YT = 0x400000
STAMP = 0x600000
WS_SIZE = 0x700000
ZP = 0
KVST = 0x100
QF = 0x400
OA = 0x2400
LP = 0x2800
XN = 0x2C00
YB = 0x4C00
PB = 0x6C00
RS = 2080
WKV = 0xAE00
UB = 0x12E00
HB = 0x15E00
CS = 4160
SX = 0x1E000
LDS_SIZE = 0x22000
SPIN = 20000
SCALE = 0x3EB8AA3B

sW, sO, sEP = 3, 4, 5
pX, pWQ, pWK, pWV, pWO, pBK, pBV, pSH, pSK, pSD, pOUT, pDBG, pWS = 8, 10, 12, 14, 16, 20, 22, 24, 26, 28, 30, 32, 34
WS = "s[36:39]"
SA, SB, SC = "s[40:43]", "s[44:47]", "s[48:51]"


def vr(a, n=1):
    return f"v{a}" if n == 1 else f"v[{a}:{a + n - 1}]"


def srd(p, base, ptr, size):
    p.e(f"s_mov_b32 s{base}, s{ptr}\ns_mov_b32 s{base + 1}, s{ptr + 1}\ns_mov_b32 s{base + 2}, {size}\ns_mov_b32 s{base + 3}, 0x20000")


_st = [0]


def stamp(p, idx):
    if not OPT["stamps"]:
        return
    p.waitall(vm=False)
    p.e("s_memrealtime s[92:93]")
    p.waitall(vm=False)
    p.e(f"v_writelane_b32 {p.stampreg}, s92, {idx}")


def stamp_flush(p):
    if not OPT["stamps"]:
        return
    p.e(f"s_mul_i32 s92, s{sO}, 12\ns_add_u32 s92, s92, s{sW}\ns_lshl_b32 s92, s92, 8\ns_add_u32 s92, s92, {STAMP}")
    p.e("v_lshlrev_b32 v1, 2, v0")
    p.e(f"buffer_store_dword {p.stampreg}, v1, {WS}, s92 offen")


def poll(p, name, load, regs, tmp_s):
    p.e(f"s_mov_b32 s{tmp_s}, {SPIN}")
    p.label(f"L_{name}")
    p.e(load)
    p.waitall(lg=False)
    for i, r in enumerate(regs):
        if i == 0:
            p.e(f"v_cmp_ne_u32 vcc, s{sEP}, v{r}")
        else:
            p.e(f"v_cmp_ne_u32 s[6:7], s{sEP}, v{r}\ns_or_b64 vcc, vcc, s[6:7]")
    p.e(f"s_cbranch_vccz L_{name}_ok")
    p.e(f"s_sleep 8\ns_sub_u32 s{tmp_s}, s{tmp_s}, 1\ns_cmp_lg_u32 s{tmp_s}, 0\ns_cbranch_scc1 L_{name}")
    p.label(f"L_{name}_ok")


def flag_store(p, t4, va, so):
    for i in range(4):
        p.e(f"v_mov_b32 v{t4 + i}, s{sEP}")
    p.e("s_mov_b64 exec, 15")
    p.e(f"buffer_store_dwordx4 {vr(t4, 4)}, v{va}, {WS}, {so} offen sc1")
    p.e("s_mov_b64 exec, -1")


def prologue():
    p = Prog("pro")
    p.e("s_cmp_ge_u32 s2, 256\ns_cbranch_scc1 L_exit")
    if OPT["stamps"]:
        p.e("s_memrealtime s[90:91]")
    p.e("s_load_dwordx16 s[8:23], s[0:1], 0\ns_load_dwordx8 s[24:31], s[0:1], 64\ns_load_dwordx4 s[32:35], s[0:1], 96")
    p.e("v_lshrrev_b32 v1, 6, v0\nv_and_b32 v0, 63, v0")
    p.e(f"v_readfirstlane_b32 s{sW}, v1")
    p.e(f"s_and_b32 s6, s2, 7\ns_lshl_b32 s6, s6, 5\ns_lshr_b32 s7, s2, 3\ns_add_u32 s{sO}, s6, s7")
    p.waitall(vm=False)
    p.e(f"s_load_dword s{sEP}, s[{pWS}:{pWS + 1}], {EPOCH}")
    srd(p, 36, pWS, WS_SIZE)
    p.e(f"s_cmp_ge_u32 s{sW}, 8\ns_cbranch_scc1 L_helper")
    return p


aL, aZ, aQ, aP, IDX = 1, 2, 4, 5, 6
X, Q, T, O, S, K, V = 8, 16, 20, 24, 40, 72, 104
aK, aV = T + 1, T + 2
sLAY, sKV0, sPUB, sSC, sRET = 56, 64, 58, 59, 57
MLO, MHI = "s[60:61]", "s[62:63]"


def layernorm(p, x, t):
    s, q = t, t + 1
    p.e(f"v_add_f32 v{s}, v{x}, v{x + 1}\nv_mul_f32 v{q}, v{x}, v{x}")
    p.e(f"v_fmac_f32 v{q}, v{x + 1}, v{x + 1}")
    for i in range(2, 8):
        p.e(f"v_add_f32 v{s}, v{s}, v{x + i}\nv_fmac_f32 v{q}, v{x + i}, v{x + i}")
    for m in ("quad_perm:[1,0,3,2] row_mask:0xf", "quad_perm:[2,3,0,1] row_mask:0xf", "row_half_mirror row_mask:0xf",
              "row_mirror row_mask:0xf", "row_bcast:15 row_mask:0xa", "row_bcast:31 row_mask:0xc"):
        p.e(f"v_add_f32_dpp v{s}, v{s}, v{s} {m} bank_mask:0xf")
        p.e(f"v_add_f32_dpp v{q}, v{q}, v{q} {m} bank_mask:0xf")
    p.e(f"v_mul_f32 v{s}, 0x3b000000, v{s}\nv_mul_f32 v{q}, 0x3b000000, v{q}")
    p.e(f"v_fma_f32 v{q}, -v{s}, v{s}, v{q}\nv_max_f32 v{q}, 0, v{q}\nv_add_f32 v{q}, 0x3727c5ac, v{q}")
    p.e(f"v_rsq_f32 v{q}, v{q}")
    p.e(f"v_mul_f32_e64 v{s}, -v{s}, v{q}")
    p.e(f"v_readlane_b32 s68, v{q}, 63\nv_readlane_b32 s69, v{s}, 63")
    p.e(f"v_mov_b32 v{s}, s69")


def wkv_reads(p):
    t = T
    p.e(f"v_lshrrev_b32 v{t}, 5, v0\nv_lshlrev_b32 v{t}, 4, v{t}")
    p.e(f"v_bfe_u32 v{t + 1}, v0, 4, 1\nv_lshl_add_u32 v{t}, v{t + 1}, 2, v{t}")
    p.e(f"v_bfe_u32 v{t + 1}, v0, 3, 1\nv_lshl_add_u32 v{t}, v{t + 1}, 3, v{t}")
    p.e(f"v_bfe_u32 v{t + 1}, v0, 2, 1\nv_add_u32 v{t}, v{t}, v{t + 1}")
    p.e(f"v_and_b32 v{t + 1}, 3, v0\nv_lshlrev_b32 v{t + 1}, 3, v{t + 1}\nv_lshl_add_u32 v{t}, v{t}, 5, v{t + 1}")
    p.e(f"s_lshl_b32 s6, s{sW}, 14\ns_add_u32 s6, s6, {WKV}\nv_add_u32 v{t}, s6, v{t}")
    for kb in range(8):
        for a in range(4):
            off = (64 * kb + 32 * (a >> 1) + 2 * (a & 1)) * 32
            p.e(f"ds_read_b64_tr_b16 {vr(S + 8 * kb + 2 * a, 2)}, v{t} offset:{off}")


def kv_loads(p, kt):
    so = f"s{sKV0 + (kt >> 1)}"
    im = (kt & 1) * 2048
    p.e(f"buffer_load_dwordx4 {vr(K + 4 * kt, 4)}, v{aK}, {WS}, {so} offen offset:{im} sc1")
    p.e(f"s_mov_b64 exec, {MLO}")
    p.e(f"buffer_load_dwordx4 {vr(V + 8 * kt, 4)}, v{aV}, {WS}, {so} offen offset:{im} sc1")
    p.e(f"buffer_load_dwordx4 {vr(V + 8 * kt + 4, 4)}, v{aV}, {WS}, {so} offen offset:{im + 1024} sc1")
    p.e("s_mov_b64 exec, -1")


def wq_gather(p):
    srd(p, 44, pWQ, 0x80000)
    p.e("v_lshrrev_b32 v49, 5, v0\nv_lshlrev_b32 v48, 14, v49\nv_bfe_u32 v49, v0, 4, 1\nv_lshl_add_u32 v48, v49, 12, v48")
    p.e("v_and_b32 v49, 15, v0\nv_lshl_add_u32 v48, v49, 1, v48")
    p.e(f"s_and_b32 s74, s{sW}, 1\ns_and_b32 s6, s{sO}, 7\ns_lshl_b32 s6, s6, 16\ns_lshl_b32 s7, s74, 15\ns_add_u32 s72, s6, s7")
    p.e(f"s_lshr_b32 s6, s{sO}, 3\ns_lshl_b32 s6, s6, 5\ns_add_u32 s72, s72, s6\ns_add_u32 s73, s72, 8192")
    for j in range(4):
        for e in range(2):
            p.e(f"buffer_load_ushort v{40 + 2 * j + e}, v48, {SB}, s{72 + (j & 1)} offen offset:{(2 * (j >> 1) + e) * 1024}")
    p.e(f"s_lshl_b32 s6, s{sO}, 1\ns_add_u32 s6, s6, s74\ns_lshl_b32 s6, s6, 10\ns_add_u32 s74, s6, {WQS}")


KR, VR, SH, PW, KU, PU, PO, WG = 40, 51, 60, 64, 69, 80, 88, 104


def prep_loads(p):
    srd(p, 44, pBK, 0x200000)
    srd(p, 48, pBV, 0x200000)
    srd(p, 52, pSH, 0x1000)
    p.e(f"s_sub_u32 s71, s{sW}, 4")
    p.e("v_lshrrev_b32 v96, 3, v0\nv_and_b32 v97, 7, v0")
    p.e("v_lshlrev_b32 v98, 13, v96\nv_lshl_add_u32 v98, v97, 2, v98")
    p.e(f"s_and_b32 s72, s{sO}, 31\ns_lshr_b32 s73, s{sO}, 5")
    p.e("s_lshl_b32 s6, s72, 16\ns_lshl_b32 s7, s73, 7\ns_add_u32 s6, s6, s7\ns_lshl_b32 s7, s71, 5\ns_add_u32 s74, s6, s7\ns_add_u32 s75, s74, 4096")
    p.e("s_sub_u32 s6, s74, 3072\nv_add_u32 v99, s6, v98")
    p.e("s_lshl_b32 s6, s73, 9\ns_lshl_b32 s7, s71, 7\ns_add_u32 s6, s6, s7\nv_lshlrev_b32 v100, 4, v97")
    p.e(f"buffer_load_dwordx4 {vr(SH, 4)}, v100, s[52:55], s6 offen")
    for r in range(3):
        p.e(f"buffer_load_dword v{KR + r}, v99, {SB}, 0 offen offset:{r * 1024}")
    for r in range(8):
        p.e(f"buffer_load_dword v{KR + 3 + r}, v98, {SB}, s{74 + (r >> 2)} offen offset:{(r & 3) * 1024}")
    for r in range(8):
        p.e(f"buffer_load_dword v{VR + r}, v98, {SC}, s{74 + (r >> 2)} offen offset:{(r & 3) * 1024}")
    p.e(f"s_cmp_ge_u32 s{sW}, 6\ns_cbranch_scc1 L_a_nowo")
    srd(p, 52, pWO, 0x80000)
    p.e("v_and_b32 v101, 15, v0\nv_lshlrev_b32 v101, 4, v101\nv_lshrrev_b32 v102, 4, v0")
    p.e("v_lshl_add_u32 v103, v102, 11, v101\nv_lshl_add_u32 v101, v102, 1, v101")
    p.e(f"s_lshl_b32 s76, s73, 16\ns_and_b32 s7, s{sO}, 7\ns_lshl_b32 s7, s7, 13\ns_add_u32 s76, s76, s7")
    p.e(f"s_bfe_u32 s6, s{sO}, 0x20003\ns_lshl_b32 s7, s6, 8\ns_add_u32 s76, s76, s7")
    p.e("s_lshl_b32 s7, s71, 3\ns_add_u32 s76, s76, s7\ns_add_u32 s77, s76, 4096")
    for j in range(4):
        for e in range(2):
            p.e(f"buffer_load_ushort v{WG + 2 * j + e}, v101, s[52:55], s{76 + (j & 1)} offen offset:{(2 * (j >> 1) + e) * 1024}")
    p.e("s_lshl_b32 s78, s73, 16\ns_lshl_b32 s7, s6, 14\ns_add_u32 s78, s78, s7\ns_lshl_b32 s7, s71, 13\ns_add_u32 s78, s78, s7")
    p.e(f"s_and_b32 s7, s{sO}, 7\ns_lshl_b32 s7, s7, 8\ns_add_u32 s78, s78, s7\ns_add_u32 s78, s78, {WOS}")
    p.label("L_a_nowo")


def prep_compute(p):
    p.waitall(lg=False)
    p.e(f"s_cmp_ge_u32 s{sW}, 6\ns_cbranch_scc1 L_a_nowo2")
    for j in range(4):
        p.e(f"v_lshl_or_b32 v{WG + 8 + j}, v{WG + 2 * j + 1}, 16, v{WG + 2 * j}")
    p.e(f"buffer_store_dwordx4 {vr(WG + 8, 4)}, v103, {WS}, s78 offen sc1")
    p.label("L_a_nowo2")
    for c in range(2):
        un = (lambda d, s: f"v_lshlrev_b32 v{d}, 16, v{s}") if c == 0 else (lambda d, s: f"v_and_b32 v{d}, 0xffff0000, v{s}")
        for j in range(2):
            p.e(f"v_lshlrev_b32 v{PW + 2 * j}, 16, v{SH + 2 * c + j}\nv_and_b32 v{PW + 2 * j + 1}, 0xffff0000, v{SH + 2 * c + j}")
        for r in range(11):
            p.e(un(KU + r, KR + r))
        for r in range(8):
            p.e(f"v_mul_f32 v{PU + r}, v{PW}, v{KU + 3 + r}")
            for j in range(1, 4):
                p.e(f"v_fmac_f32 v{PU + r}, v{PW + j}, v{KU + 3 + r - j}")
            p.e(un(PW + 4, VR + r))
            p.e(f"v_mul_f32 v{PU + r}, v{PU + r}, v{PW + 4}")
        for i in range(4):
            p.e(f"v_cvt_pk_bf16_f32 v{PO + 4 * c + i}, v{PU + 7 - 2 * i}, v{PU + 6 - 2 * i}")
    p.e("v_xor_b32 v98, 7, v96\nv_xor_b32 v98, v98, v97\nv_lshlrev_b32 v98, 4, v98\nv_lshl_add_u32 v98, v97, 8, v98")
    p.e(f"s_lshl_b32 s74, s71, 12\ns_add_u32 s74, s74, {SX}\nv_add_u32 v98, s74, v98")
    p.e(f"ds_write_b128 v98, {vr(PO, 4)}\nds_write_b128 v98, {vr(PO + 4, 4)} offset:128")
    p.e("v_lshrrev_b32 v99, 4, v0\nv_xor_b32 v99, v99, v97\nv_lshlrev_b32 v99, 4, v99\nv_lshl_add_u32 v99, v96, 7, v99\nv_add_u32 v99, s74, v99")
    p.e("v_xor_b32 v100, 64, v99")
    p.e(f"ds_read_b128 {vr(PO, 4)}, v99\nds_read_b128 {vr(PO + 4, 4)}, v100 offset:1024")
    p.e("v_lshlrev_b32 v98, 12, v96\nv_lshl_add_u32 v98, v97, 4, v98")
    p.e(f"s_lshl_b32 s6, s73, 18\ns_lshl_b32 s7, s71, 16\ns_add_u32 s6, s6, s7\ns_lshl_b32 s7, s72, 7\ns_sub_u32 s6, s6, s7\ns_add_u32 s6, s6, {UR + 3968}\ns_add_u32 s7, s6, 0x8000")
    p.e(f"buffer_store_dwordx4 {vr(PO, 4)}, v98, {WS}, s6 offen sc1")
    p.e(f"buffer_store_dwordx4 {vr(PO + 4, 4)}, v98, {WS}, s7 offen sc1")


def attention_wave():
    p = Prog("attn")
    p.stampreg = "v23"
    retry = Prog("retry")
    t = T
    srd(p, 40, pX, 0x200000)
    p.e(f"v_lshlrev_b32 v{aQ}, 4, v0")
    p.e(f"s_lshl_b32 s6, s{sO}, 3\ns_add_u32 s6, s6, s{sW}\ns_lshl_b32 s70, s6, 10")
    p.e(f"buffer_load_dwordx4 {vr(Q, 4)}, v{aQ}, {SA}, s70 offen")
    p.e(f"s_lshl_b32 s79, s6, 6\ns_add_u32 s79, s79, {FLAG1}")
    p.e(f"s_cmp_ge_u32 s{sW}, 4\ns_cbranch_scc1 L_a_nodma")
    p.e(f"s_cmp_ge_u32 s{sW}, 2\ns_cbranch_scc1 L_a_wq")
    p.e(f"s_cmp_eq_u32 s{sW}, 0")
    p.e(f"s_cselect_b32 s44, s{pWK}, s{pWV}\ns_cselect_b32 s45, s{pWK + 1}, s{pWV + 1}\ns_mov_b32 s46, 0x4000\ns_mov_b32 s47, 0x20000")
    p.e(f"s_lshl_b32 s6, s{sW}, 14\ns_add_u32 s6, s6, {WKV}")
    for i in range(4):
        p.e(f"s_add_u32 m0, s6, {i * 4096}\ns_mov_b32 s7, {i * 4096}")
        for j in range(4):
            p.e(f"buffer_load_dwordx4 v{aQ}, {SB}, s7 offen offset:{j * 1024} lds")
    p.e("s_branch L_a_nodma")
    p.label("L_a_wq")
    wq_gather(p)
    p.label("L_a_nodma")
    p.e("s_mov_b32 s60, 0xffff\ns_mov_b32 s61, 0xffff\ns_mov_b32 s62, 0xffff0000\ns_mov_b32 s63, 0xffff0000")
    p.e(f"s_lshl_b32 s6, s{sO}, 9\ns_lshl_b32 s7, s{sW}, 8\ns_add_u32 s{sPUB}, s6, s7\ns_add_u32 s{sPUB}, s{sPUB}, {KV1}")
    p.e(f"s_cmp_eq_u32 s{sW}, 0\ns_cselect_b32 s{sSC}, {SCALE}, 1.0")
    p.e(f"v_and_b32 v{t + 1}, 31, v0\nv_lshlrev_b32 v{t + 2}, 4, v{t + 1}")
    p.e(f"v_mov_b32 v103, 0\nv_mov_b32 v{IDX}, 0xdddd\nv_mov_b32 v{aZ}, 0\nv_mov_b32 v{aZ + 1}, 0")
    p.e(f"s_lshl_b32 s6, s{sW}, 11\ns_add_u32 s6, s6, {PB}\nv_add_u32 v{aP}, s6, v{aQ}")
    p.e(f"s_lshr_b32 s6, s{sW}, 2\ns_lshl_b32 s6, s6, 9\ns_and_b32 s7, s{sW}, 3\ns_lshl_b32 s7, s7, 2\ns_add_u32 s6, s6, s7\ns_add_u32 s6, s6, {LP}")
    p.e(f"v_add_u32 v{aL}, s6, v{t + 2}")
    p.e(f"v_and_b32 v{t + 1}, 27, v{t + 1}\nv_cmp_eq_u32 vcc, 16, v{t + 1}\nv_mov_b32 v{t + 1}, 0x3f803f80")
    p.e(f"v_cndmask_b32 v{V + 62}, 0, v{t + 1}, vcc")
    p.e(f"v_mov_b32 v{V + 63}, v{V + 62}")
    for i in range(16, 31):
        p.e(f"v_mov_b64 {vr(V + 2 * i, 2)}, {vr(V + 62, 2)}")
    p.e(f"s_mov_b32 s{sLAY}, 0\ns_lshl_b32 s6, s{sW}, 14\ns_add_u32 s{sKV0}, s6, {KV1}")
    if OPT["stamps"]:
        p.e("v_mov_b32 v23, 0\nv_writelane_b32 v23, s90, 0")
    p.waitall()
    p.e(f"s_add_u32 s{sEP}, s{sEP}, 0x9e3779b1")
    stamp(p, 1)
    p.e(f"ds_write_b64 v{aZ}, {vr(aZ, 2)}\nds_write_b64 v{aZ}, {vr(aZ, 2)} offset:8")
    p.e(f"s_cmp_ge_u32 s{sW}, 4\ns_cbranch_scc1 L_a_r4")
    p.e(f"s_cmp_ge_u32 s{sW}, 2\ns_cbranch_scc1 L_a_r2")
    wkv_reads(p)
    p.e("s_branch L_a_r")
    p.label("L_a_r2")
    for j in range(4):
        p.e(f"v_lshl_or_b32 v{48 + j}, v{41 + 2 * j}, 16, v{40 + 2 * j}")
    p.e(f"buffer_store_dwordx4 v[48:51], v{aQ}, {WS}, s74 offen sc1")
    p.e("s_branch L_a_r")
    p.label("L_a_r4")
    prep_loads(p)
    p.label("L_a_r")
    p.q["vm"] = []
    p.pend = {}
    for i in range(4):
        p.e(f"v_lshlrev_b32 v{X + 2 * i}, 16, v{Q + i}\nv_and_b32 v{X + 2 * i + 1}, 0xffff0000, v{Q + i}")
    p.label("L_a_layer")
    layernorm(p, X, T)
    for i in range(8):
        p.e(f"v_fma_f32 v{O + i}, v{X + i}, s68, v{T}")
    for i in range(4):
        p.e(f"v_cvt_pk_bf16_f32 v{Q + i}, v{O + 2 * i}, v{O + 2 * i + 1}")
    p.e(f"v_bfe_u32 v{t}, v0, 1, 2\nv_xor_b32 v{t + 1}, s{sW}, v{t}\nv_lshlrev_b32 v{t + 1}, 5, v{t + 1}")
    p.e(f"v_lshl_add_u32 v{t + 1}, v{t}, 8, v{t + 1}\nv_and_b32 v{t}, 1, v0\nv_lshl_add_u32 v{t + 1}, v{t}, 4, v{t + 1}")
    p.e(f"v_lshrrev_b32 v{t}, 3, v0\nv_lshl_add_u32 v{t + 1}, v{t}, 10, v{t + 1}")
    p.e(f"ds_write_b128 v{t + 1}, {vr(Q, 4)} offset:{XN}")
    p.waitall(vm=False)
    p.bar("XN")
    stamp(p, 2)
    p.e(f"s_cmp_ge_u32 s{sW}, 2\ns_cbranch_scc1 L_a_nokv")
    p.begin_if("kv")
    p.e(f"v_lshrrev_b32 v{t}, 4, v0\nv_lshlrev_b32 v{t + 1}, 5, v{t}\nv_xor_b32 v{t + 1}, v{t + 1}, v{aQ}")
    for kb in range(8):
        p.e(f"ds_read_b128 {vr(V + 4 * kb, 4)}, v{t + 1} offset:{XN + kb * 1024}")
    p.e(f"v_and_b32 v{t + 2}, 1, v0\nv_mul_u32_u24 v{t + 2}, 0xaaaa, v{t + 2}\nv_add_u32 v{t + 2}, 0x4444, v{t + 2}")
    p.e(f"v_mov_b64 {vr(O, 2)}, 0\nv_mov_b64 {vr(O + 2, 2)}, 0")
    p.e(f"v_bfe_u32 v{O + 4}, v0, 3, 1\nv_lshlrev_b32 v{O + 4}, 7, v{O + 4}\nv_lshl_add_u32 v{O + 4}, v{t}, 5, v{O + 4}")
    p.e(f"v_and_b32 v{O + 5}, 7, v0\nv_lshl_add_u32 v{O + 4}, v{O + 5}, 1, v{O + 4}\nv_add_u32 v{O + 5}, 16, v{O + 4}")
    p.e(f"s_cmp_eq_u32 s{sW}, 0\ns_cbranch_scc1 L_a_isk")
    p.e(f"v_and_b32 v{O + 4}, 15, v0\nv_lshlrev_b32 v{O + 4}, 4, v{O + 4}\nv_lshl_add_u32 v{O + 4}, v{t}, 2, v{O + 4}")
    p.e(f"v_add_u32 v{O + 4}, 256, v{O + 4}\nv_add_u32 v{O + 5}, 2, v{O + 4}")
    p.label("L_a_isk")
    p.e(f"s_lshl_b32 s6, s{sW}, 8\nv_add_u32 v{O + 6}, s6, v{aQ}")
    for kb in range(8):
        p.e(f"v_smfmac_f32_16x16x64_bf16 {vr(O, 4)}, {vr(V + 4 * kb, 4)}, {vr(S + 8 * kb, 8)}, v{t + 2}")
    p.e(f"v_add_f32 v{O}, v{O}, v{O + 1}\nv_add_f32 v{O + 2}, v{O + 2}, v{O + 3}")
    p.e(f"v_mul_f32 v{O}, s{sSC}, v{O}\nv_mul_f32 v{O + 2}, s{sSC}, v{O + 2}")
    p.e(f"v_cvt_pk_bf16_f32 v{O}, v{O}, v{O + 2}")
    p.e(f"ds_write_b16 v{O + 4}, v{O} offset:{KVST}\nds_write_b16_d16_hi v{O + 5}, v{O} offset:{KVST}")
    p.e("s_mov_b64 exec, 0xffff")
    p.e(f"ds_read_b128 {vr(Q, 4)}, v{O + 6} offset:{KVST}")
    p.e(f"buffer_store_dwordx4 {vr(Q, 4)}, v{aQ}, {WS}, s{sPUB} offen sc1")
    p.e(f"s_cmp_lg_u32 s{sLAY}, 0\ns_cbranch_scc1 L_a_nosent")
    p.e(f"v_mov_b64 {vr(O, 2)}, -1\nv_mov_b64 {vr(O + 2, 2)}, -1\ns_add_u32 s7, s{sPUB}, {KV2 - KV1}")
    p.e(f"buffer_store_dwordx4 {vr(O, 4)}, v{aQ}, {WS}, s7 offen sc1")
    p.label("L_a_nosent")
    p.e("s_mov_b64 exec, -1")
    p.end_if()
    p.label("L_a_nokv")
    stamp(p, 3)

    def setup():
        p.e(f"s_mov_b64 exec, {MHI}")
        for i in range(16):
            p.e(f"v_mov_b64 {vr(V + 2 * i, 2)}, {vr(V + 62, 2)}")
        p.e("s_mov_b64 exec, -1")

    for i in range(1, 4):
        p.e(f"s_add_u32 s{sKV0 + i}, s{sKV0}, {i * 4096}")
    p.e(f"s_mov_b32 s{sRET}, {SPIN}")
    p.e(f"v_bfe_u32 v{t}, v0, 3, 2\nv_lshlrev_b32 v{aK}, 9, v{t}")
    p.e(f"v_and_b32 v{t}, 7, v0\nv_lshl_add_u32 v{aK}, v{t}, 4, v{aK}")
    p.e(f"v_and_b32 v{aV}, 31, v0\nv_lshlrev_b32 v{aV}, 4, v{aV}\nv_lshrrev_b32 v{t}, 5, v0")
    p.e(f"v_lshl_add_u32 v{aK}, v{t}, 7, v{aK}\nv_lshl_add_u32 v{aV}, v{t}, 9, v{aV}\nv_add_u32 v{aV}, 256, v{aV}")
    p.e(f"s_cmp_lg_u32 s{sLAY}, 0\ns_cbranch_scc1 L_a_l2sync")
    p.e(f"v_lshrrev_b32 v{t}, 1, v0\nv_lshlrev_b32 v{t}, 9, v{t}\nv_and_b32 v7, 1, v0\nv_lshl_add_u32 v7, v7, 6, v{t}")
    p.e(f"s_lshl_b32 s80, s{sW}, 14\ns_add_u32 s80, s80, {FLAG1}")
    p.e(f"s_cmp_ge_u32 s{sW}, 4\ns_cbranch_scc1 L_a_b1")
    setup()
    p.waitall()
    flag_store(p, O, aQ, "s79")
    p.e("s_barrier ; PUB")
    p.e(f"s_sleep {OPT.get('d1', 8)}")
    poll(p, "a_f1", f"buffer_load_dword v{t}, v7, {WS}, s80 offen sc1", [t], 81)
    p.e("s_branch L_a_ld")
    p.label("L_a_b1")
    p.e("s_barrier ; PUB")
    prep_compute(p)
    setup()
    poll(p, "a_f2", f"buffer_load_dword v{t}, v7, {WS}, s80 offen sc1", [t], 81)
    flag_store(p, O, aQ, "s79")
    p.e("s_branch L_a_ld")
    p.label("L_a_l2sync")
    setup()
    p.waitall()
    p.bar("PUB")
    p.label("L_a_ld")
    stamp(p, 4)
    for kt in range(8):
        kv_loads(p, kt)
    for i in range(8):
        p.e(f"v_mov_b64 {vr(O + 2 * i, 2)}, 0")
    p.bar("Q0")
    p.e(f"ds_read_b128 {vr(Q, 4)}, v{aQ} offset:{QF}")

    def check(kt):
        p.e(f"v_max3_u32 v{T}, v{K + 4 * kt}, v{V + 8 * kt}, v{V + 8 * kt + 4}")
        p.e(f"v_cmp_eq_u32 vcc, -1, v{T}")
        p.e(f"s_cbranch_vccnz L_a_retry{kt}")
        p.label(f"L_a_back{kt}")
        r = retry
        r.label(f"L_a_retry{kt}")
        r.e(f"s_sub_u32 s{sRET}, s{sRET}, 1\ns_cmp_lt_i32 s{sRET}, 0\ns_cbranch_scc1 L_a_back{kt}")
        r.e("s_sleep 6")
        kv_loads(r, kt)
        r.waitall(lg=False)
        r.e(f"v_max3_u32 v{T}, v{K + 4 * kt}, v{V + 8 * kt}, v{V + 8 * kt + 4}")
        r.e(f"v_cmp_eq_u32 vcc, -1, v{T}")
        r.e(f"s_cbranch_vccnz L_a_retry{kt}\ns_branch L_a_back{kt}")

    def Sb(i):
        return S + 16 * (i & 1)

    def qk(kt):
        p.e(f"v_mfma_f32_32x32x16_bf16 {vr(Sb(kt), 16)}, {vr(K + 4 * kt, 4)}, {vr(Q, 4)}, 0")

    def pv(kt, s):
        p.e(f"v_smfmac_f32_32x32x32_bf16 {vr(O, 16)}, {vr(V + 8 * kt + 4 * s, 4)}, {vr(Sb(kt) + 8 * s, 8)}, v{IDX}")

    def put_partial():
        p.e(f"ds_write_b128 v{aP}, {vr(O, 4)}\nds_write_b128 v{aP}, {vr(O + 4, 4)} offset:1024\nds_write_b32 v{aL}, v{O + 8}")

    check(0)
    qk(0)
    stamp(p, 5)
    for j in range(8):
        for kt in range(8):
            first = j > 0 and kt == 0
            last = j == 7 and kt == 7
            for e in range(16):
                p.e(f"v_exp_f32 v{Sb(kt) + e}, v{Sb(kt) + e}")
                if e == 1 and not (j == 0 and kt == 0): pv((kt - 1) % 8, 1)
                if e == 4 and not last:
                    if j == 0 and kt < 7: check(kt + 1)
                    qk((kt + 1) % 8)
                    if kt == 6 and j < 7:
                        p.e(f"ds_read_b128 {vr(Q, 4)}, v{aQ} offset:{QF + (j + 1) * 1024}")
                if e == (12 if first else 9): pv(kt, 0)
                if e == 8 and first:
                    put_partial()
                    p.e(f"v_mfma_f32_32x32x8bf16_1k {vr(O, 16)}, {vr(aZ, 2)}, {vr(aZ, 2)}, 0")
                    p.e("s_setprio 0")
            if j > 0 and kt == 1:
                p.waitall(vm=False)
                p.bar(f"Y{j}")
            if kt == 5:
                p.bar(f"X{j}")
                p.e("s_setprio 1")
    pv(7, 1)
    put_partial()
    p.waitall(vm=False)
    p.e("s_setprio 0")
    p.bar("Y8")
    stamp(p, 6)
    Yr = O
    p.bar("X8")
    for i in range(4):
        p.e(f"v_mov_b64 {vr(Yr + 2 * i, 2)}, 0")
    p.e(f"s_lshl_b32 s6, s{sW}, 1\nv_add_u32 v{t}, s6, v{aQ}")
    for i in range(8):
        p.e(f"ds_read_u16_d16_hi v{Yr + i}, v{t} offset:{YB + i * 1024}")
    p.e(f"s_mul_i32 s6, s{sW}, {RS}\ns_add_u32 s6, s6, {PB}\nv_lshlrev_b32 v{t + 2}, 5, v0\nv_add_u32 v{t + 2}, s6, v{t + 2}")
    p.e(f"s_lshl_b32 s6, s{sLAY}, 1\ns_add_u32 s6, s6, s{sW}\ns_cmp_ge_u32 s6, 2\ns_cbranch_scc1 L_a_nowkv")
    p.begin_if("wkv1")
    wkv_reads(p)
    p.end_if()
    p.label("L_a_nowkv")
    p.bar("OUT")
    p.e(f"ds_read_b128 {vr(O + 8, 4)}, v{t + 2}\nds_read_b128 {vr(O + 12, 4)}, v{t + 2} offset:16")
    stamp(p, 7)
    for i in range(8):
        p.e(f"v_add_f32 v{X + i}, v{X + i}, v{O + 8 + i}")
    layernorm(p, X, T)
    for i in range(8):
        p.e(f"v_fma_f32 v{O + 8 + i}, v{X + i}, s68, v{T}")
    for i in range(8):
        p.e(f"v_fmac_f32 v{X + i}, v{O + 8 + i}, v{Yr + i}")
    p.e(f"s_cmp_lg_u32 s{sLAY}, 0\ns_cbranch_scc1 L_a_final")
    p.e(f"s_mov_b32 s{sLAY}, 1\ns_add_u32 s{sPUB}, s{sPUB}, {KV2 - KV1}\ns_add_u32 s{sKV0}, s{sKV0}, {KV2 - KV1}")
    if OPT["stamps"]:
        p.e("s_nop 1\nv_mov_b32_dpp v22, v23 row_shr:8 row_mask:0xf bank_mask:0xf\ns_mov_b64 exec, 0xff00\nv_mov_b32 v23, v22\ns_mov_b64 exec, -1")
    p.e("s_branch L_a_layer")
    p.label("L_a_final")
    for i in range(4):
        p.e(f"v_cvt_pk_bf16_f32 v{Q + i}, v{X + 2 * i}, v{X + 2 * i + 1}")
    srd(p, 40, pOUT, 0x200000)
    p.e(f"buffer_store_dwordx4 {vr(Q, 4)}, v{aQ}, {SA}, s70 offen")
    p.e(f"s_or_b32 s6, s{sO}, s{sW}\ns_cmp_lg_u32 s6, 0\ns_cbranch_scc1 L_a_end")
    p.e(f"v_mov_b32 v{t}, s{sEP}\ns_mov_b64 exec, 1")
    p.e(f"buffer_store_dword v{t}, v{aZ}, {WS}, 0 offen")
    p.e("s_mov_b64 exec, -1")
    p.label("L_a_end")
    stamp(p, 0)
    stamp_flush(p)
    p.e("s_endpgm")
    p.ins += retry.ins
    return p


hW, hIDX, hXN, hQW, hPR, hLR, hOW, hMX, hH, hU, hZ = 1, 2, 3, 4, 5, 6, 7, 9, 10, 11, 15
hT0 = 12
OACC, QACC, AF, HT, SACC, RING = 16, 48, 52, 60, 84, 116
sH, sHB, sD, sSO = 56, 57, 58, 59


class Stream:
    def __init__(self, p, frags, slots):
        self.p, self.frags, self.free = p, frags, list(slots)
        self.next_issue = 0
        self.inflight = []
        self.cur_so = None
        self.retired = set()
        self.limit = len(frags)

    def pump(self, maxn=99):
        n = 0
        while self.free and self.next_issue < self.limit and n < maxn:
            off = self.frags[self.next_issue]
            slot = self.free.pop(0)
            base = off & ~4095
            if base != self.cur_so:
                self.p.e(f"s_add_u32 s{sSO}, s{sHB}, {base}")
                self.cur_so = base
            for J in range(2):
                self.p.e(f"buffer_load_dwordx4 {vr(slot + 4 * J, 4)}, v{hW}, {WS}, s{sSO} offen offset:{(off & 4095) + J * 1024} sc1")
            self.inflight.append(slot)
            self.next_issue += 1
            n += 1

    def take(self):
        return self.inflight.pop(0)

    def release(self, slot, pump=True):
        if slot not in self.retired:
            self.free.append(slot)
        if pump:
            self.pump()


def merge(a, b):
    a, b = list(a), list(b)
    i = j = 0
    while i < len(a) or j < len(b):
        if j >= len(b) or (i < len(a) and i * len(b) <= j * len(a)):
            a[i](); i += 1
        else:
            b[j](); j += 1


def helper_wave():
    p = Prog("help")
    p.stampreg = "v8"
    slow = Prog("hslow")
    t = hT0
    p.label("L_helper")
    p.e("s_setprio 3")
    p.e(f"s_sub_u32 s{sH}, s{sW}, 8\ns_lshl_b32 s{sHB}, s{sH}, 14")
    p.e(f"v_lshlrev_b32 v{hW}, 4, v0\nv_mov_b32 v{hZ}, 0")
    p.e(f"s_lshl_b32 s6, s{sO}, 2\ns_load_dword s{sD}, s[{pSD}:{pSD + 1}], s6")
    p.e(f"s_lshr_b32 s70, s{sH}, 1\ns_and_b32 s71, s{sH}, 1\ns_lshl_b32 s6, s{sO}, 1\ns_add_u32 s72, s6, s70")
    p.e(f"s_lshl_b32 s6, s72, 12\ns_add_u32 s52, s{pSK}, s6\ns_addc_u32 s53, s{pSK + 1}, 0\ns_mov_b32 s54, 0x1000\ns_mov_b32 s55, 0x20000")
    p.e(f"s_mul_i32 s73, s{sH}, {2 * CS}\ns_add_u32 s73, s73, {HB}")
    p.e(f"s_mul_i32 s74, s{sH}, 3072\ns_add_u32 s74, s74, {UB}")
    p.e(f"s_lshl_b32 s75, s{sH}, 12\ns_add_u32 s75, s75, {SX}")
    p.e(f"v_and_b32 v30, 31, v0\nv_and_b32 v{t + 1}, 7, v0")
    p.e(f"v_and_b32 v{hIDX}, 1, v0\nv_mul_u32_u24 v{hIDX}, 0xaaaa, v{hIDX}\nv_add_u32 v{hIDX}, 0x4444, v{hIDX}")
    p.e(f"v_lshrrev_b32 v{t}, 4, v0\nv_lshlrev_b32 v{hXN}, 5, v{t}\nv_xor_b32 v{hXN}, v{hXN}, v{hW}")
    p.e(f"v_bfe_u32 v{hQW}, v0, 3, 1\nv_lshlrev_b32 v{hQW}, 9, v{hQW}\nv_lshl_add_u32 v{hQW}, v{t}, 5, v{hQW}")
    p.e(f"v_lshl_add_u32 v{hQW}, v{t + 1}, 1, v{hQW}\ns_lshl_b32 s6, s{sH}, 7\nv_add_u32 v{hQW}, s6, v{hQW}")
    p.e(f"s_lshl_b32 s6, s70, 10\ns_lshl_b32 s7, s71, 3\ns_add_u32 s6, s6, s7\ns_add_u32 s6, s6, {PB}\nv_add_u32 v{hPR}, s6, v{hW}")
    p.e(f"v_lshlrev_b32 v{hLR}, 4, v30")
    p.e(f"v_lshrrev_b32 v{t + 2}, 5, v0\nv_lshlrev_b32 v{hOW}, 5, v30\nv_lshl_add_u32 v{hOW}, v{t + 2}, 4, v{hOW}")
    p.e(f"s_lshl_b32 s6, s{sH}, 2\nv_add_u32 v{hOW}, s6, v{hOW}\nv_mov_b32 v{hMX}, 0")
    p.e(f"v_add_u32 v60, 1, v30\nv_and_b32 v61, 3, v60\nv_sub_u32 v60, v60, v61\nv_mul_u32_u24 v61, {CS}, v61")
    p.e(f"v_lshl_add_u32 v61, v60, 1, v61\nv_lshl_add_u32 v61, v{t + 2}, 4, v61")
    p.e(f"s_mul_i32 s6, s70, {4 * CS}\ns_lshl_b32 s7, s71, 10\ns_add_u32 s6, s6, s7\ns_add_u32 s6, s6, {HB}\nv_add_u32 v{hH}, s6, v61")
    p.e(f"v_sub_u32 v60, 31, v30\nv_lshlrev_b32 v60, 4, v60\nv_mul_u32_u24 v61, 1536, v{t + 2}\nv_add_u32 v60, v60, v61")
    p.e(f"s_mul_i32 s76, s70, 6144\ns_add_u32 s76, s76, {UB}\ns_lshl_b32 s7, s71, 8\ns_add_u32 s6, s76, s7\nv_add_u32 v{hU}, s6, v60")
    p.e(f"v_add_u32 v80, v{t + 2}, v30\ns_lshl_b32 s6, s71, 1\ns_sub_u32 s6, s6, 32\nv_add_u32 v80, s6, v80\nv_lshlrev_b32 v80, 1, v80")
    p.e(f"v_mul_u32_u24 v81, {CS}, v{t + 2}\nv_lshl_add_u32 v81, v30, 1, v81\nv_add_u32 v81, s73, v81")
    p.e(f"v_lshrrev_b32 v166, 3, v0\nv_lshlrev_b32 v166, 14, v166\nv_lshl_add_u32 v166, v{t + 1}, 9, v166")
    p.e(f"s_lshl_b32 s77, s{sH}, 12\ns_add_u32 s77, s77, {FLAG1}")
    p.e(f"v_lshlrev_b32 v167, 9, v30\ns_lshr_b32 s6, s{sO}, 5\ns_lshl_b32 s6, s6, 14\ns_bfe_u32 s7, s{sO}, 0x20003\ns_lshl_b32 s7, s7, 6")
    p.e(f"s_add_u32 s6, s6, s7\ns_add_u32 s79, s6, {FLAG1 + 256}")
    p.waitall(vm=False)
    p.e(f"s_add_u32 s{sEP}, s{sEP}, 0x9e3779b1")
    p.e(f"s_lshl_b32 s6, s{sD}, 16\ns_and_b32 s7, s{sD}, 0xffff0000\ns_cmp_eq_u32 s70, 0\ns_cselect_b32 s{sD}, s6, s7")
    if OPT["stamps"]:
        p.e("v_mov_b32 v8, 0\nv_writelane_b32 v8, s90, 0")
    for i in range(16):
        p.e(f"v_mov_b64 {vr(OACC + 2 * i, 2)}, 0")
    p.e(f"v_add_u32 v61, v61, v{hLR}\nv_add_u32 v61, s74, v61")
    p.e(f"ds_write_b128 v61, {vr(OACC, 4)} offset:1024")
    stamp(p, 1)
    p.bar("XN")
    p.bar("PUB")
    stamp(p, 2)
    poll(p, "h_fw", f"buffer_load_dword v164, v166, {WS}, s77 offen offset:128 sc1\nbuffer_load_dword v165, v166, {WS}, s77 offen offset:192 sc1", [164, 165], 78)
    stamp(p, 3)

    frags = []
    for L in range(2):
        order = ["Q0", "Q1", "Q2", "O0", "Q3", "O1", "Q4", "O2", "Q5", "O3", "Q6", "O4", "Q7", "O5", "O6", "O7"]
        for nm in order:
            base = (WQS if nm[0] == "Q" else WOS) + int(nm[1]) * 65536
            frags += [base + i * 2048 for i in range(8)]
    sacc_slots = [SACC + 8 * i for i in range(4)]
    st = Stream(p, frags, sacc_slots + [RING + 8 * i for i in range(6)])
    st.retired = set(sacc_slots)
    st.limit = 24
    st.pump()

    def qproj(tile):
        def head():
            p.e(f"ds_read_b128 {vr(QACC, 4)}, v{hZ}")
            p.e(f"ds_read_b128 {vr(AF, 4)}, v{hXN} offset:{XN}")
        yield head
        for kb in range(8):
            def step(kb=kb):
                if kb < 7:
                    p.e(f"ds_read_b128 {vr(AF + 4 * ((kb + 1) & 1), 4)}, v{hXN} offset:{XN + (kb + 1) * 1024}")
                s = st.take()
                p.e(f"v_smfmac_f32_16x16x64_bf16 {vr(QACC, 4)}, {vr(AF + 4 * (kb & 1), 4)}, {vr(s, 8)}, v{hIDX}")
                st.release(s)
            yield step

        def fin():
            p.e(f"v_add_f32 v{t}, v{QACC}, v{QACC + 1}\nv_add_f32 v{t + 1}, v{QACC + 2}, v{QACC + 3}")
            p.e(f"v_cvt_pk_bf16_f32 v{t}, v{t}, v{t + 1}")
            p.e(f"ds_write_b16 v{hQW}, v{t} offset:{QF + tile * 1024}\nds_write_b16_d16_hi v{hQW}, v{t} offset:{QF + tile * 1024 + 16}")
        yield fin

    def reduce():
        a, L = HT, HT + 16
        p.e(f"ds_read_b128 {vr(L, 4)}, v{hLR} offset:{LP}\nds_read_b128 {vr(L + 4, 4)}, v{hLR} offset:{LP + 512}")
        for w in range(8):
            p.e(f"ds_read_b64 {vr(a + 2 * w, 2)}, v{hPR} offset:{w * 2048}")
        for i in range(1, 8):
            p.e(f"v_add_f32 v{L}, v{L}, v{L + i}")
        p.e(f"v_rcp_f32 v{L + 1}, v{L}")
        p.waitall(vm=False)
        for w in range(1, 8):
            p.e(f"v_add_f32 v{a}, v{a}, v{a + 2 * w}\nv_add_f32 v{a + 1}, v{a + 1}, v{a + 2 * w + 1}")
        p.e(f"v_mul_f32 v{a}, v{a}, v{L + 1}\nv_mul_f32 v{a + 1}, v{a + 1}, v{L + 1}")
        p.e(f"v_cvt_pk_bf16_f32 v{a}, v{a}, v{a + 1}")
        p.e(f"ds_write_b32 v{hOW}, v{a} offset:{OA}")
        p.e(f"v_max3_f32 v{hMX}, v{hMX}, v{L}, v{L + 1}")

    def oproj(pump=True):
        yield lambda: p.e(f"ds_read_b128 {vr(AF, 4)}, v{hW} offset:{OA}")
        for ct in range(8):
            def step(ct=ct):
                s = st.take()
                p.e(f"v_smfmac_f32_16x16x64_bf16 {vr(OACC + 4 * ct, 4)}, {vr(AF, 4)}, {vr(s, 8)}, v{hIDX}")
                st.release(s, pump)
            yield step

    def ssm(i0, n):
        Al, Ah, B0, B1 = HT, HT + 4, HT + 8, HT + 12
        D0, D1 = SACC, SACC + 16

        def boff(i):
            b8 = 2 * i - 4
            return (b8 & 3) * 1536 + ((b8 >> 2) + 1) * 16

        rAl = lambda i: p.e(f"ds_read_b64 {vr(Al, 2)}, v{hH} offset:{32 * i}\nds_read_b64 {vr(Al + 2, 2)}, v{hH} offset:{32 * i + 8}")
        rAh = lambda i: p.e(f"ds_read_b64 {vr(Ah, 2)}, v{hH} offset:{32 * i + 2048}\nds_read_b64 {vr(Ah + 2, 2)}, v{hH} offset:{32 * i + 2056}")
        rB0 = lambda i: p.e(f"ds_read_b128 {vr(B0, 4)}, v{hU} offset:{boff(i) + 512}")
        rB1 = lambda i: p.e(f"ds_read_b128 {vr(B1, 4)}, v{hU} offset:{boff(i)}")
        if n:
            yield lambda: (rB1(i0), rAl(i0), rB0(i0), rAh(i0))
        for i in range(i0, i0 + n):
            more = i + 1 < i0 + n

            def m1(i=i, more=more):
                p.e(f"v_mfma_f32_32x32x16_bf16 {vr(D1, 16)}, {vr(Al, 4)}, {vr(B1, 4)}, {vr(D1, 16) if i else 0}")
                if more: rB1(i + 1)

            def m2(i=i, more=more):
                p.e(f"v_mfma_f32_32x32x16_bf16 {vr(D0, 16)}, {vr(Al, 4)}, {vr(B0, 4)}, {vr(D0, 16) if i else 0}")
                if more: rAl(i + 1)

            def m3(i=i, more=more):
                p.e(f"v_mfma_f32_32x32x16_bf16 {vr(D1, 16)}, {vr(Ah, 4)}, {vr(B0, 4)}, {vr(D1, 16)}")
                if more: rB0(i + 1); rAh(i + 1)
            yield m1
            yield m2
            yield m3

    def ssm_send():
        p.e(f"v_add_u32 v{t}, s75, v{hW}")
        p.e("s_nop 7\ns_nop 3")
        p.waitall(vm=False)
        p.e("s_cmp_eq_u32 s71, 0\ns_cbranch_scc1 L_h_s0")
        for i in range(4):
            p.e(f"ds_write_b128 v{t}, {vr(SACC + 4 * i, 4)} offset:{i * 1024}")
        p.e("s_branch L_h_s1")
        p.label("L_h_s0")
        for i in range(4):
            p.e(f"ds_write_b128 v{t}, {vr(SACC + 16 + 4 * i, 4)} offset:{i * 1024}")
        p.label("L_h_s1")
        p.waitall(vm=False)

    def ssm_finish():
        R = HT
        p.e(f"s_xor_b32 s6, s75, 0x1000\nv_add_u32 v{t}, s6, v{hW}")
        for i in range(4):
            p.e(f"ds_read_b128 {vr(R + 4 * i, 4)}, v{t} offset:{i * 1024}")
        p.e(f"v_and_b32 v{t + 1}, 31, v0\nv_lshrrev_b32 v{t + 2}, 5, v0\nv_lshl_add_u32 v164, v{t + 2}, 3, v{hLR}")
        p.e(f"s_lshl_b32 s7, s71, 9\ns_sub_u32 s7, s76, s7\ns_add_u32 s7, s7, {63 * 16 + 8}\nv_sub_u32 v164, s7, v164")
        for b in range(4):
            p.e(f"ds_read_b64 {vr(R + 16 + 2 * b, 2)}, v164 offset:{(3 - b) * 1536}")
        p.waitall(vm=False)
        p.e("s_cmp_eq_u32 s71, 0\ns_cbranch_scc1 L_h_f0")
        for i in range(16):
            p.e(f"v_add_f32 v{R + i}, v{R + i}, v{SACC + 16 + i}")
        p.e("s_branch L_h_f1")
        p.label("L_h_f0")
        for i in range(16):
            p.e(f"v_add_f32 v{R + i}, v{R + i}, v{SACC + i}")
        p.label("L_h_f1")
        for b in range(4):
            u0, u1 = R + 16 + 2 * b, R + 17 + 2 * b
            p.e(f"v_and_b32 v165, 0xffff0000, v{u1}\nv_fmac_f32 v{R + 4 * b}, s{sD}, v165")
            p.e(f"v_lshlrev_b32 v165, 16, v{u1}\nv_fmac_f32 v{R + 4 * b + 1}, s{sD}, v165")
            p.e(f"v_and_b32 v165, 0xffff0000, v{u0}\nv_fmac_f32 v{R + 4 * b + 2}, s{sD}, v165")
            p.e(f"v_lshlrev_b32 v165, 16, v{u0}\nv_fmac_f32 v{R + 4 * b + 3}, s{sD}, v165")
            p.e(f"v_cvt_pk_bf16_f32 v{R + 4 * b}, v{R + 4 * b}, v{R + 4 * b + 1}\nv_cvt_pk_bf16_f32 v{R + 4 * b + 1}, v{R + 4 * b + 2}, v{R + 4 * b + 3}")
        p.e(f"v_mul_u32_u24 v164, 80, v{t + 1}\nv_lshl_add_u32 v164, v{t + 2}, 3, v164\nv_add_u32 v164, s6, v164")
        for b in range(4):
            p.e(f"ds_write_b64 v164, {vr(R + 4 * b, 2)} offset:{b * 16}")
        p.e("v_lshrrev_b32 v164, 2, v0\nv_mul_u32_u24 v164, 80, v164\nv_and_b32 v165, 3, v0\nv_lshl_add_u32 v164, v165, 4, v164\nv_add_u32 v164, s6, v164")
        p.e(f"ds_read_b128 {vr(R, 4)}, v164\nds_read_b128 {vr(R + 4, 4)}, v164 offset:1280")
        p.e(f"s_lshl_b32 s6, s72, 12\ns_lshl_b32 s7, s71, 11\ns_add_u32 s6, s6, s7\ns_add_u32 s6, s6, {YT}")
        p.e(f"buffer_store_dwordx4 {vr(R, 4)}, v{hW}, {WS}, s6 offen sc1")
        return p.e(f"buffer_store_dwordx4 {vr(R + 4, 4)}, v{hW}, {WS}, s6 offen offset:1024 sc1")

    def checked(name, load, regs):
        for i, r in enumerate(regs):
            if i == 0:
                p.e(f"v_cmp_ne_u32 vcc, s{sEP}, v{r}")
            else:
                p.e(f"v_cmp_ne_u32 s[6:7], s{sEP}, v{r}\ns_or_b64 vcc, vcc, s[6:7]")
        p.e(f"s_cbranch_vccnz L_{name}_slow")
        p.label(f"L_{name}_back")
        slow.label(f"L_{name}_slow")
        poll(slow, name, load, regs, 78)
        slow.e(f"s_branch L_{name}_back")

    det = [16]
    cur = [0]

    def sync(name):
        p.waitall(vm=False)
        d = OPT["stamps"] and OPT.get("detail", 0) == cur[0]
        if d:
            stamp(p, det[0]); det[0] += 1
        p.bar(name)
        if d:
            stamp(p, det[0]); det[0] += 1

    for L in range(2):
        cur[0] = L
        merge(qproj(0), [])
        stamp(p, 4 + 8 * L)
        if L == 1:
            p.bar("PUB")
        sync("Q0")
        merge(qproj(1), [])
        if L == 0:
            for ce in range(2):
                p.e(f"s_add_u32 m0, s73, {ce * CS + 64}\ns_lshl_b32 s6, s71, 2\ns_add_u32 s6, s6, {2 * ce}")
                for i in range(4):
                    p.e(f"buffer_load_dwordx4 v{hW}, s[52:55], s6 offen offset:{i * 1024} lds")
            p.e("buffer_load_ushort v80, v80, s[52:55], 0 offen")
            uload = (f"buffer_load_dword v164, v167, {WS}, s79 offen sc1\nbuffer_load_dword v165, v166, {WS}, s77 offen offset:256 sc1\n"
                     f"buffer_load_dword v82, v166, {WS}, s77 offen offset:320 sc1")
        sync("X0")
        if L == 0:
            p.e(uload)
            p.e("ds_write_b16 v81, v80")
            checked("h_fu", uload, [164, 165, 82])
            p.e(f"v_lshlrev_b32 v165, 6, v0\ns_lshl_b32 s6, s72, 12\ns_lshl_b32 s7, s71, 5\ns_add_u32 s6, s6, s7\ns_add_u32 s6, s6, {UR}\ns_add_u32 s7, s6, 16")
            p.e("s_mov_b32 m0, s74")
            p.e(f"buffer_load_dwordx4 v165, {WS}, s6 offen sc1 lds")
            p.e("s_add_u32 m0, s74, 1536")
            p.wait(p.e(f"buffer_load_dwordx4 v165, {WS}, s7 offen sc1 lds"))
            st.limit = len(frags)
        sync("Y1")
        for j in range(1, 8):
            reduce()
            merge(qproj(j + 1) if j < 7 else [], ssm(8 * j - 8, 4) if L == 0 and j <= 4 else [])
            if L == 0 and j == 5:
                ytok = ssm_finish()
                st.retired = set()
                st.free += sacc_slots
                st.pump()
            if L == 0 and j == 7:
                checked("h_fy", yload, [164, 165])
                p.e(f"v_lshlrev_b32 v166, 15, v0\ns_lshl_b32 s6, s{sH}, 13\ns_lshl_b32 s7, s{sO}, 4\ns_add_u32 s6, s6, s7\ns_add_u32 s6, s6, {YT}\ns_add_u32 s7, s6, 4096")
                p.e(f"s_lshl_b32 s80, s{sH}, 11\ns_add_u32 m0, s80, {YB}")
                p.e(f"buffer_load_dwordx4 v166, {WS}, s6 offen sc1 lds")
                p.e(f"s_add_u32 m0, s80, {YB + 1024}")
                gtok = p.e(f"buffer_load_dwordx4 v166, {WS}, s7 offen sc1 lds")
            sync(f"X{j}")
            merge(oproj(), ssm(8 * j - 4, 4) if L == 0 and j <= 4 else [])
            if L == 0 and j == 4:
                ssm_send()
            if L == 0 and j == 5:
                p.wait(ytok)
                p.e("s_and_b32 s6, s72, 7\ns_lshl_b32 s6, s6, 12\ns_lshr_b32 s7, s72, 3\ns_lshl_b32 s7, s7, 6\ns_add_u32 s6, s6, s7")
                p.e(f"s_lshl_b32 s7, s71, 15\ns_add_u32 s6, s6, s7\ns_add_u32 s6, s6, {FLAG2}")
                flag_store(p, HT, hW, "s6")
            if L == 0 and j == 6:
                p.e(f"v_lshlrev_b32 v167, 6, v0\ns_lshr_b32 s6, s{sO}, 7\ns_lshl_b32 s6, s6, 15\ns_lshl_b32 s7, s{sH}, 13\ns_add_u32 s6, s6, s7\ns_add_u32 s79, s6, {FLAG2}\ns_add_u32 s81, s79, 4096")
                yload = f"buffer_load_dword v164, v167, {WS}, s79 offen sc1\nbuffer_load_dword v165, v167, {WS}, s81 offen sc1"
                p.e(yload)
            if j == 7:
                p.e(f"v_lshrrev_b32 v{t}, 4, v0\nv_mul_u32_u24 v{t}, {2 * RS}, v{t}\nv_and_b32 v{t + 1}, 15, v0\nv_lshl_add_u32 v{t}, v{t + 1}, 5, v{t}")
                p.e(f"s_lshl_b32 s6, s{sH}, 9\ns_add_u32 s6, s6, {PB}\nv_add_u32 v{t}, s6, v{t}")
            sync(f"Y{j + 1}")
        reduce()
        if L == 0:
            p.wait(gtok)
        sync("X8")
        merge(oproj(pump=False), [])
        for ct in range(8):
            p.e(f"v_add_f32 v{HT + ct}, v{OACC + 4 * ct}, v{OACC + 4 * ct + 1}\nv_add_f32 v{HT + 8 + ct}, v{OACC + 4 * ct + 2}, v{OACC + 4 * ct + 3}")
            if ct == 3:
                p.e(f"ds_write_b128 v{t}, {vr(HT, 4)}\nds_write_b128 v{t}, {vr(HT + 8, 4)} offset:{RS}")
        p.e(f"ds_write_b128 v{t}, {vr(HT + 4, 4)} offset:16\nds_write_b128 v{t}, {vr(HT + 12, 4)} offset:{RS + 16}")
        sync("OUT")
        if L == 0:
            st.pump()
            for i in range(16):
                p.e(f"v_mov_b64 {vr(OACC + 2 * i, 2)}, 0")
            p.bar("XN")
    stamp_flush(p)
    p.e("s_endpgm")
    p.ins += slow.ins
    return p


def main():
    ref = open(f"cdna_kernels/{NAME}.s.ref").read()
    head = [l for l in ref.split("\n") if l.startswith(";") and "@launch" not in l]
    pro, att, hel = prologue(), attention_wave(), helper_wave()
    assert att.bars + att.bars == hel.bars, (att.bars, hel.bars)
    out = "\n".join(head) + f"\n; @launch grid=(256,1,1) block=(768,1,1) lds={LDS_SIZE}\n"
    out += f""".amdgcn_target "amdgcn-amd-amdhsa--gfx950"
.text
.globl {NAME}_kernel
.p2align 8
.type {NAME}_kernel,@function
{NAME}_kernel:
"""
    out += pro.text() + att.text() + hel.text() + "L_exit:\n    s_endpgm\n"
    out += f""".section .rodata,"a"
.p2align 6
.amdhsa_kernel {NAME}_kernel
  .amdhsa_next_free_vgpr 168
  .amdhsa_next_free_sgpr 96
  .amdhsa_accum_offset 168
  .amdhsa_group_segment_fixed_size 0
  .amdhsa_kernarg_size 112
  .amdhsa_user_sgpr_count 2
  .amdhsa_user_sgpr_kernarg_segment_ptr 1
  .amdhsa_system_sgpr_workgroup_id_x 1
.end_amdhsa_kernel
"""
    open(sys.argv[1], "w").write(out)
    print("nops added:", pro.nops_added, att.nops_added, hel.nops_added, "instr:", len(att.ins), len(hel.ins))


main()
```

```python
import sys, os
sys.path.insert(0, os.path.dirname(os.path.abspath(__file__)))
from asmlib import Prog

NAME = "interleave_layers__grouped_kv_mqa__ssm_conv_h3__prompt"
OPT = dict(stamps=0)
for a in sys.argv[2:]:
    k, v = a.split("=")
    OPT[k] = int(v)

EPOCH = 0
FLAG1 = 0x50000
FLAGH = 0x70000
FLAG2 = 0x80000
KV1 = 0x10000
KV2 = 0x30000
WQS = 0x100000
WOS = 0x180000
UR = 0x200000
YT = 0x400000
STAMP = 0x600000
WS_SIZE = 0x700000
ZP = 0
KVST = 0x100
QF = 0x400
OA = 0x2400
LP = 0x2800
XN = 0x2C00
YB = 0x4C00
PB = 0x6C00
RS = 2080
WKV = 0xAE00
UB = 0x12E00
HB = 0x15E00
CS = 4160
SX = 0x1E000
LDS_SIZE = 0x22000
SPIN = 20000
SCALE = 0x3EB8AA3B

sW, sO, sEP = 3, 4, 5
pX, pWQ, pWK, pWV, pWO, pBK, pBV, pSH, pSK, pSD, pOUT, pDBG, pWS = 8, 10, 12, 14, 16, 20, 22, 24, 26, 28, 30, 32, 34
WS = "s[36:39]"
SA, SB, SC = "s[40:43]", "s[44:47]", "s[48:51]"


def vr(a, n=1):
    return f"v{a}" if n == 1 else f"v[{a}:{a + n - 1}]"


def srd(p, base, ptr, size):
    p.e(f"s_mov_b32 s{base}, s{ptr}\ns_mov_b32 s{base + 1}, s{ptr + 1}\ns_mov_b32 s{base + 2}, {size}\ns_mov_b32 s{base + 3}, 0x20000")


_st = [0]


def stamp(p, idx):
    if "echo" in OPT and p.name == "attn" and OPT["echo"] % 8 == idx and OPT["echo"] >= 0:
        p.waitall(vm=False)
        p.e("s_memrealtime s[92:93]")
        p.waitall(vm=False)
        p.e(f"s_cmp_eq_u32 s56, {OPT['echo'] // 8}\ns_cselect_b32 s94, s92, s94")
    if not OPT["stamps"]:
        return
    p.waitall(vm=False)
    p.e("s_memrealtime s[92:93]")
    p.waitall(vm=False)
    p.e(f"v_writelane_b32 {p.stampreg}, s92, {idx}")


def stamp_flush(p):
    if not OPT["stamps"]:
        return
    p.e(f"s_mul_i32 s92, s{sO}, 12\ns_add_u32 s92, s92, s{sW}\ns_lshl_b32 s92, s92, 8\ns_add_u32 s92, s92, {STAMP}")
    p.e("v_lshlrev_b32 v1, 2, v0")
    p.e(f"buffer_store_dword {p.stampreg}, v1, {WS}, s92 offen")


def poll(p, name, load, regs, tmp_s):
    p.e(f"s_mov_b32 s{tmp_s}, {SPIN}")
    p.label(f"L_{name}")
    p.e(load)
    p.waitall(lg=False)
    for i, r in enumerate(regs):
        if i == 0:
            p.e(f"v_cmp_ne_u32 vcc, s{sEP}, v{r}")
        else:
            p.e(f"v_cmp_ne_u32 s[6:7], s{sEP}, v{r}\ns_or_b64 vcc, vcc, s[6:7]")
    p.e(f"s_cbranch_vccz L_{name}_ok")
    p.e(f"s_sleep 8\ns_sub_u32 s{tmp_s}, s{tmp_s}, 1\ns_cmp_lg_u32 s{tmp_s}, 0\ns_cbranch_scc1 L_{name}")
    p.label(f"L_{name}_ok")


def flag_store(p, t4, va, so):
    for i in range(4):
        p.e(f"v_mov_b32 v{t4 + i}, s{sEP}")
    p.e("s_mov_b64 exec, 15")
    p.e(f"buffer_store_dwordx4 {vr(t4, 4)}, v{va}, {WS}, {so} offen sc1")
    p.e("s_mov_b64 exec, -1")


def prologue():
    p = Prog("pro")
    p.e("s_cmp_ge_u32 s2, 256\ns_cbranch_scc1 L_exit")
    if OPT["stamps"] or "echo" in OPT:
        p.e("s_memrealtime s[90:91]")
    p.e("s_load_dwordx16 s[8:23], s[0:1], 0\ns_load_dwordx8 s[24:31], s[0:1], 64\ns_load_dwordx4 s[32:35], s[0:1], 96")
    p.e("v_lshrrev_b32 v1, 6, v0\nv_and_b32 v0, 63, v0")
    p.e(f"v_readfirstlane_b32 s{sW}, v1")
    p.e(f"s_and_b32 s6, s2, 7\ns_lshl_b32 s6, s6, 5\ns_lshr_b32 s7, s2, 3\ns_add_u32 s{sO}, s6, s7")
    p.waitall(vm=False)
    p.e(f"s_load_dword s{sEP}, s[{pWS}:{pWS + 1}], {EPOCH}")
    srd(p, 36, pWS, WS_SIZE)
    p.e(f"s_cmp_ge_u32 s{sW}, 8\ns_cbranch_scc1 L_helper")
    return p


aL, aZ, aQ, aP, IDX = 1, 2, 4, 5, 6
X, Q, T, O, S, K, V = 8, 16, 20, 24, 40, 72, 104
aK, aV = T + 1, T + 2
sLAY, sKV0, sPUB, sSC, sRET = 56, 64, 58, 59, 57
MLO, MHI = "s[60:61]", "s[62:63]"


def layernorm(p, x, t):
    s, q = t, t + 1
    p.e(f"v_add_f32 v{s}, v{x}, v{x + 1}\nv_mul_f32 v{q}, v{x}, v{x}")
    p.e(f"v_fmac_f32 v{q}, v{x + 1}, v{x + 1}")
    for i in range(2, 8):
        p.e(f"v_add_f32 v{s}, v{s}, v{x + i}\nv_fmac_f32 v{q}, v{x + i}, v{x + i}")
    for m in ("quad_perm:[1,0,3,2] row_mask:0xf", "quad_perm:[2,3,0,1] row_mask:0xf", "row_half_mirror row_mask:0xf",
              "row_mirror row_mask:0xf", "row_bcast:15 row_mask:0xa", "row_bcast:31 row_mask:0xc"):
        p.e(f"v_add_f32_dpp v{s}, v{s}, v{s} {m} bank_mask:0xf")
        p.e(f"v_add_f32_dpp v{q}, v{q}, v{q} {m} bank_mask:0xf")
    p.e(f"v_mul_f32 v{s}, 0x3b000000, v{s}\nv_mul_f32 v{q}, 0x3b000000, v{q}")
    p.e(f"v_fma_f32 v{q}, -v{s}, v{s}, v{q}\nv_max_f32 v{q}, 0, v{q}\nv_add_f32 v{q}, 0x3727c5ac, v{q}")
    p.e(f"v_rsq_f32 v{q}, v{q}")
    p.e(f"v_mul_f32_e64 v{s}, -v{s}, v{q}")
    p.e(f"v_readlane_b32 s68, v{q}, 63\nv_readlane_b32 s69, v{s}, 63")
    p.e(f"v_mov_b32 v{s}, s69")


def wkv_reads(p):
    t = T
    p.e(f"v_lshrrev_b32 v{t}, 5, v0\nv_lshlrev_b32 v{t}, 4, v{t}")
    p.e(f"v_bfe_u32 v{t + 1}, v0, 4, 1\nv_lshl_add_u32 v{t}, v{t + 1}, 2, v{t}")
    p.e(f"v_bfe_u32 v{t + 1}, v0, 3, 1\nv_lshl_add_u32 v{t}, v{t + 1}, 3, v{t}")
    p.e(f"v_bfe_u32 v{t + 1}, v0, 2, 1\nv_add_u32 v{t}, v{t}, v{t + 1}")
    p.e(f"v_and_b32 v{t + 1}, 3, v0\nv_lshlrev_b32 v{t + 1}, 3, v{t + 1}\nv_lshl_add_u32 v{t}, v{t}, 5, v{t + 1}")
    p.e(f"s_lshl_b32 s6, s{sW}, 14\ns_add_u32 s6, s6, {WKV}\nv_add_u32 v{t}, s6, v{t}")
    for kb in range(8):
        for a in range(4):
            off = (64 * kb + 32 * (a >> 1) + 2 * (a & 1)) * 32
            p.e(f"ds_read_b64_tr_b16 {vr(S + 8 * kb + 2 * a, 2)}, v{t} offset:{off}")


def kv_loads(p, kt):
    so = f"s{sKV0 + (kt >> 1)}"
    im = (kt & 1) * 2048
    p.e(f"buffer_load_dwordx4 {vr(K + 4 * kt, 4)}, v{aK}, {WS}, {so} offen offset:{im} sc1")
    p.e(f"s_mov_b64 exec, {MLO}")
    p.e(f"buffer_load_dwordx4 {vr(V + 8 * kt, 4)}, v{aV}, {WS}, {so} offen offset:{im} sc1")
    p.e(f"buffer_load_dwordx4 {vr(V + 8 * kt + 4, 4)}, v{aV}, {WS}, {so} offen offset:{im + 1024} sc1")
    p.e("s_mov_b64 exec, -1")


def wq_gather(p):
    srd(p, 44, pWQ, 0x80000)
    p.e("v_lshrrev_b32 v49, 5, v0\nv_lshlrev_b32 v48, 14, v49\nv_bfe_u32 v49, v0, 4, 1\nv_lshl_add_u32 v48, v49, 12, v48")
    p.e("v_and_b32 v49, 15, v0\nv_lshl_add_u32 v48, v49, 1, v48")
    p.e(f"s_and_b32 s74, s{sW}, 1\ns_and_b32 s6, s{sO}, 7\ns_lshl_b32 s6, s6, 16\ns_lshl_b32 s7, s74, 15\ns_add_u32 s72, s6, s7")
    p.e(f"s_lshr_b32 s6, s{sO}, 3\ns_lshl_b32 s6, s6, 5\ns_add_u32 s72, s72, s6\ns_add_u32 s73, s72, 8192")
    for j in range(4):
        for e in range(2):
            p.e(f"buffer_load_ushort v{40 + 2 * j + e}, v48, {SB}, s{72 + (j & 1)} offen offset:{(2 * (j >> 1) + e) * 1024}")
    p.e(f"s_lshl_b32 s6, s{sO}, 1\ns_add_u32 s6, s6, s74\ns_lshl_b32 s6, s6, 10\ns_add_u32 s74, s6, {WQS}")


KR, VR, SH, PW, KU, PU, PO, WG = 40, 51, 60, 64, 69, 80, 88, 104


def prep_loads(p):
    srd(p, 44, pBK, 0x200000)
    srd(p, 48, pBV, 0x200000)
    srd(p, 52, pSH, 0x1000)
    p.e(f"s_sub_u32 s71, s{sW}, 4")
    p.e("v_lshrrev_b32 v96, 3, v0\nv_and_b32 v97, 7, v0")
    p.e("v_lshlrev_b32 v98, 13, v96\nv_lshl_add_u32 v98, v97, 2, v98")
    p.e(f"s_and_b32 s72, s{sO}, 31\ns_lshr_b32 s73, s{sO}, 5")
    p.e("s_lshl_b32 s6, s72, 16\ns_lshl_b32 s7, s73, 7\ns_add_u32 s6, s6, s7\ns_lshl_b32 s7, s71, 5\ns_add_u32 s74, s6, s7\ns_add_u32 s75, s74, 4096")
    p.e("s_sub_u32 s6, s74, 3072\nv_add_u32 v99, s6, v98")
    p.e("s_lshl_b32 s6, s73, 9\ns_lshl_b32 s7, s71, 7\ns_add_u32 s6, s6, s7\nv_lshlrev_b32 v100, 4, v97")
    p.e(f"buffer_load_dwordx4 {vr(SH, 4)}, v100, s[52:55], s6 offen")
    for r in range(3):
        p.e(f"buffer_load_dword v{KR + r}, v99, {SB}, 0 offen offset:{r * 1024}")
    for r in range(8):
        p.e(f"buffer_load_dword v{KR + 3 + r}, v98, {SB}, s{74 + (r >> 2)} offen offset:{(r & 3) * 1024}")
    for r in range(8):
        p.e(f"buffer_load_dword v{VR + r}, v98, {SC}, s{74 + (r >> 2)} offen offset:{(r & 3) * 1024}")
    p.e(f"s_cmp_ge_u32 s{sW}, 6\ns_cbranch_scc1 L_a_nowo")
    srd(p, 52, pWO, 0x80000)
    p.e("v_and_b32 v101, 15, v0\nv_lshlrev_b32 v101, 4, v101\nv_lshrrev_b32 v102, 4, v0")
    p.e("v_lshl_add_u32 v103, v102, 11, v101\nv_lshl_add_u32 v101, v102, 1, v101")
    p.e(f"s_lshl_b32 s76, s73, 16\ns_and_b32 s7, s{sO}, 7\ns_lshl_b32 s7, s7, 13\ns_add_u32 s76, s76, s7")
    p.e(f"s_bfe_u32 s6, s{sO}, 0x20003\ns_lshl_b32 s7, s6, 8\ns_add_u32 s76, s76, s7")
    p.e("s_lshl_b32 s7, s71, 3\ns_add_u32 s76, s76, s7\ns_add_u32 s77, s76, 4096")
    for j in range(4):
        for e in range(2):
            p.e(f"buffer_load_ushort v{WG + 2 * j + e}, v101, s[52:55], s{76 + (j & 1)} offen offset:{(2 * (j >> 1) + e) * 1024}")
    p.e("s_lshl_b32 s78, s73, 16\ns_lshl_b32 s7, s6, 14\ns_add_u32 s78, s78, s7\ns_lshl_b32 s7, s71, 13\ns_add_u32 s78, s78, s7")
    p.e(f"s_and_b32 s7, s{sO}, 7\ns_lshl_b32 s7, s7, 8\ns_add_u32 s78, s78, s7\ns_add_u32 s78, s78, {WOS}")
    p.label("L_a_nowo")


def prep_compute(p):
    p.waitall(lg=False)
    p.e(f"s_cmp_ge_u32 s{sW}, 6\ns_cbranch_scc1 L_a_nowo2")
    for j in range(4):
        p.e(f"v_lshl_or_b32 v{WG + 8 + j}, v{WG + 2 * j + 1}, 16, v{WG + 2 * j}")
    p.e(f"buffer_store_dwordx4 {vr(WG + 8, 4)}, v103, {WS}, s78 offen sc1")
    p.label("L_a_nowo2")
    for c in range(2):
        un = (lambda d, s: f"v_lshlrev_b32 v{d}, 16, v{s}") if c == 0 else (lambda d, s: f"v_and_b32 v{d}, 0xffff0000, v{s}")
        for j in range(2):
            p.e(f"v_lshlrev_b32 v{PW + 2 * j}, 16, v{SH + 2 * c + j}\nv_and_b32 v{PW + 2 * j + 1}, 0xffff0000, v{SH + 2 * c + j}")
        for r in range(11):
            p.e(un(KU + r, KR + r))
        for r in range(8):
            p.e(f"v_mul_f32 v{PU + r}, v{PW}, v{KU + 3 + r}")
            for j in range(1, 4):
                p.e(f"v_fmac_f32 v{PU + r}, v{PW + j}, v{KU + 3 + r - j}")
            p.e(un(PW + 4, VR + r))
            p.e(f"v_mul_f32 v{PU + r}, v{PU + r}, v{PW + 4}")
        for i in range(4):
            p.e(f"v_cvt_pk_bf16_f32 v{PO + 4 * c + i}, v{PU + 7 - 2 * i}, v{PU + 6 - 2 * i}")
    p.e("v_xor_b32 v98, 7, v96\nv_xor_b32 v98, v98, v97\nv_lshlrev_b32 v98, 4, v98\nv_lshl_add_u32 v98, v97, 8, v98")
    p.e(f"s_lshl_b32 s74, s71, 12\ns_add_u32 s74, s74, {SX}\nv_add_u32 v98, s74, v98")
    p.e(f"ds_write_b128 v98, {vr(PO, 4)}\nds_write_b128 v98, {vr(PO + 4, 4)} offset:128")
    p.e("v_lshrrev_b32 v99, 4, v0\nv_xor_b32 v99, v99, v97\nv_lshlrev_b32 v99, 4, v99\nv_lshl_add_u32 v99, v96, 7, v99\nv_add_u32 v99, s74, v99")
    p.e("v_xor_b32 v100, 64, v99")
    p.e(f"ds_read_b128 {vr(PO, 4)}, v99\nds_read_b128 {vr(PO + 4, 4)}, v100 offset:1024")
    p.e("v_lshlrev_b32 v98, 12, v96\nv_lshl_add_u32 v98, v97, 4, v98")
    p.e(f"s_lshl_b32 s6, s73, 18\ns_lshl_b32 s7, s71, 16\ns_add_u32 s6, s6, s7\ns_lshl_b32 s7, s72, 7\ns_sub_u32 s6, s6, s7\ns_add_u32 s6, s6, {UR + 3968}\ns_add_u32 s7, s6, 0x8000")
    p.e(f"buffer_store_dwordx4 {vr(PO, 4)}, v98, {WS}, s6 offen sc1")
    p.e(f"buffer_store_dwordx4 {vr(PO + 4, 4)}, v98, {WS}, s7 offen sc1")


def attention_wave():
    p = Prog("attn")
    p.stampreg = "v23"
    retry = Prog("retry")
    t = T
    srd(p, 40, pX, 0x200000)
    p.e(f"v_lshlrev_b32 v{aQ}, 4, v0")
    p.e(f"s_lshl_b32 s6, s{sO}, 3\ns_add_u32 s6, s6, s{sW}\ns_lshl_b32 s70, s6, 10")
    p.e(f"buffer_load_dwordx4 {vr(Q, 4)}, v{aQ}, {SA}, s70 offen")
    p.e(f"s_lshl_b32 s79, s6, 6\ns_add_u32 s79, s79, {FLAG1}")
    p.e(f"s_cmp_ge_u32 s{sW}, 4\ns_cbranch_scc1 L_a_nodma")
    p.e(f"s_cmp_ge_u32 s{sW}, 2\ns_cbranch_scc1 L_a_wq")
    p.e(f"s_cmp_eq_u32 s{sW}, 0")
    p.e(f"s_cselect_b32 s44, s{pWK}, s{pWV}\ns_cselect_b32 s45, s{pWK + 1}, s{pWV + 1}\ns_mov_b32 s46, 0x4000\ns_mov_b32 s47, 0x20000")
    p.e(f"s_lshl_b32 s6, s{sW}, 14\ns_add_u32 s6, s6, {WKV}")
    for i in range(4):
        p.e(f"s_add_u32 m0, s6, {i * 4096}\ns_mov_b32 s7, {i * 4096}")
        for j in range(4):
            p.e(f"buffer_load_dwordx4 v{aQ}, {SB}, s7 offen offset:{j * 1024} lds")
    p.e("s_branch L_a_nodma")
    p.label("L_a_wq")
    wq_gather(p)
    p.label("L_a_nodma")
    p.e("s_mov_b32 s60, 0xffff\ns_mov_b32 s61, 0xffff\ns_mov_b32 s62, 0xffff0000\ns_mov_b32 s63, 0xffff0000")
    p.e(f"s_lshl_b32 s6, s{sO}, 9\ns_lshl_b32 s7, s{sW}, 8\ns_add_u32 s{sPUB}, s6, s7\ns_add_u32 s{sPUB}, s{sPUB}, {KV1}")
    p.e(f"s_cmp_eq_u32 s{sW}, 0\ns_cselect_b32 s{sSC}, {SCALE}, 1.0")
    p.e(f"v_and_b32 v{t + 1}, 31, v0\nv_lshlrev_b32 v{t + 2}, 4, v{t + 1}")
    p.e(f"v_mov_b32 v103, 0\nv_mov_b32 v{IDX}, 0xdddd\nv_mov_b32 v{aZ}, 0\nv_mov_b32 v{aZ + 1}, 0")
    p.e(f"s_lshl_b32 s6, s{sW}, 11\ns_add_u32 s6, s6, {PB}\nv_add_u32 v{aP}, s6, v{aQ}")
    p.e(f"s_lshr_b32 s6, s{sW}, 2\ns_lshl_b32 s6, s6, 9\ns_and_b32 s7, s{sW}, 3\ns_lshl_b32 s7, s7, 2\ns_add_u32 s6, s6, s7\ns_add_u32 s6, s6, {LP}")
    p.e(f"v_add_u32 v{aL}, s6, v{t + 2}")
    p.e(f"v_and_b32 v{t + 1}, 27, v{t + 1}\nv_cmp_eq_u32 vcc, 16, v{t + 1}\nv_mov_b32 v{t + 1}, 0x3f803f80")
    p.e(f"v_cndmask_b32 v{V + 62}, 0, v{t + 1}, vcc")
    p.e(f"v_mov_b32 v{V + 63}, v{V + 62}")
    for i in range(16, 31):
        p.e(f"v_mov_b64 {vr(V + 2 * i, 2)}, {vr(V + 62, 2)}")
    p.e(f"s_mov_b32 s{sLAY}, 0\ns_lshl_b32 s6, s{sW}, 14\ns_add_u32 s{sKV0}, s6, {KV1}")
    if OPT["stamps"]:
        p.e("v_mov_b32 v23, 0\nv_writelane_b32 v23, s90, 0")
    if "echo" in OPT:
        p.e("s_mov_b32 s94, s90")
    p.waitall()
    p.e(f"s_add_u32 s{sEP}, s{sEP}, 0x9e3779b1")
    stamp(p, 1)
    p.e(f"ds_write_b64 v{aZ}, {vr(aZ, 2)}\nds_write_b64 v{aZ}, {vr(aZ, 2)} offset:8")
    p.e(f"s_cmp_ge_u32 s{sW}, 4\ns_cbranch_scc1 L_a_r4")
    p.e(f"s_cmp_ge_u32 s{sW}, 2\ns_cbranch_scc1 L_a_r2")
    wkv_reads(p)
    p.e("s_branch L_a_r")
    p.label("L_a_r2")
    for j in range(4):
        p.e(f"v_lshl_or_b32 v{48 + j}, v{41 + 2 * j}, 16, v{40 + 2 * j}")
    p.e(f"buffer_store_dwordx4 v[48:51], v{aQ}, {WS}, s74 offen sc1")
    p.e("s_branch L_a_r")
    p.label("L_a_r4")
    prep_loads(p)
    p.label("L_a_r")
    p.q["vm"] = []
    p.pend = {}
    for i in range(4):
        p.e(f"v_lshlrev_b32 v{X + 2 * i}, 16, v{Q + i}\nv_and_b32 v{X + 2 * i + 1}, 0xffff0000, v{Q + i}")
    p.label("L_a_layer")
    layernorm(p, X, T)
    for i in range(8):
        p.e(f"v_fma_f32 v{O + i}, v{X + i}, s68, v{T}")
    for i in range(4):
        p.e(f"v_cvt_pk_bf16_f32 v{Q + i}, v{O + 2 * i}, v{O + 2 * i + 1}")
    p.e(f"v_bfe_u32 v{t}, v0, 1, 2\nv_xor_b32 v{t + 1}, s{sW}, v{t}\nv_lshlrev_b32 v{t + 1}, 5, v{t + 1}")
    p.e(f"v_lshl_add_u32 v{t + 1}, v{t}, 8, v{t + 1}\nv_and_b32 v{t}, 1, v0\nv_lshl_add_u32 v{t + 1}, v{t}, 4, v{t + 1}")
    p.e(f"v_lshrrev_b32 v{t}, 3, v0\nv_lshl_add_u32 v{t + 1}, v{t}, 10, v{t + 1}")
    p.e(f"ds_write_b128 v{t + 1}, {vr(Q, 4)} offset:{XN}")
    p.waitall(vm=False)
    p.bar("XN")
    stamp(p, 2)
    p.e(f"s_cmp_ge_u32 s{sW}, 2\ns_cbranch_scc1 L_a_nokv")
    p.begin_if("kv")
    p.e(f"v_lshrrev_b32 v{t}, 4, v0\nv_lshlrev_b32 v{t + 1}, 5, v{t}\nv_xor_b32 v{t + 1}, v{t + 1}, v{aQ}")
    for kb in range(8):
        p.e(f"ds_read_b128 {vr(V + 4 * kb, 4)}, v{t + 1} offset:{XN + kb * 1024}")
    p.e(f"v_and_b32 v{t + 2}, 1, v0\nv_mul_u32_u24 v{t + 2}, 0xaaaa, v{t + 2}\nv_add_u32 v{t + 2}, 0x4444, v{t + 2}")
    p.e(f"v_mov_b64 {vr(O, 2)}, 0\nv_mov_b64 {vr(O + 2, 2)}, 0")
    p.e(f"v_bfe_u32 v{O + 4}, v0, 3, 1\nv_lshlrev_b32 v{O + 4}, 7, v{O + 4}\nv_lshl_add_u32 v{O + 4}, v{t}, 5, v{O + 4}")
    p.e(f"v_and_b32 v{O + 5}, 7, v0\nv_lshl_add_u32 v{O + 4}, v{O + 5}, 1, v{O + 4}\nv_add_u32 v{O + 5}, 16, v{O + 4}")
    p.e(f"s_cmp_eq_u32 s{sW}, 0\ns_cbranch_scc1 L_a_isk")
    p.e(f"v_and_b32 v{O + 4}, 15, v0\nv_lshlrev_b32 v{O + 4}, 4, v{O + 4}\nv_lshl_add_u32 v{O + 4}, v{t}, 2, v{O + 4}")
    p.e(f"v_add_u32 v{O + 4}, 256, v{O + 4}\nv_add_u32 v{O + 5}, 2, v{O + 4}")
    p.label("L_a_isk")
    p.e(f"s_lshl_b32 s6, s{sW}, 8\nv_add_u32 v{O + 6}, s6, v{aQ}")
    for kb in range(8):
        p.e(f"v_smfmac_f32_16x16x64_bf16 {vr(O, 4)}, {vr(V + 4 * kb, 4)}, {vr(S + 8 * kb, 8)}, v{t + 2}")
    p.e(f"v_add_f32 v{O}, v{O}, v{O + 1}\nv_add_f32 v{O + 2}, v{O + 2}, v{O + 3}")
    p.e(f"v_mul_f32 v{O}, s{sSC}, v{O}\nv_mul_f32 v{O + 2}, s{sSC}, v{O + 2}")
    p.e(f"v_cvt_pk_bf16_f32 v{O}, v{O}, v{O + 2}")
    p.e(f"ds_write_b16 v{O + 4}, v{O} offset:{KVST}\nds_write_b16_d16_hi v{O + 5}, v{O} offset:{KVST}")
    p.e("s_mov_b64 exec, 0xffff")
    p.e(f"ds_read_b128 {vr(Q, 4)}, v{O + 6} offset:{KVST}")
    p.e(f"buffer_store_dwordx4 {vr(Q, 4)}, v{aQ}, {WS}, s{sPUB} offen sc1")
    p.e(f"s_cmp_lg_u32 s{sLAY}, 0\ns_cbranch_scc1 L_a_nosent")
    p.e(f"v_mov_b64 {vr(O, 2)}, -1\nv_mov_b64 {vr(O + 2, 2)}, -1\ns_add_u32 s7, s{sPUB}, {KV2 - KV1}")
    p.e(f"buffer_store_dwordx4 {vr(O, 4)}, v{aQ}, {WS}, s7 offen sc1")
    p.label("L_a_nosent")
    p.e("s_mov_b64 exec, -1")
    p.end_if()
    p.label("L_a_nokv")
    stamp(p, 3)

    def setup():
        p.e(f"s_mov_b64 exec, {MHI}")
        for i in range(16):
            p.e(f"v_mov_b64 {vr(V + 2 * i, 2)}, {vr(V + 62, 2)}")
        p.e("s_mov_b64 exec, -1")

    for i in range(1, 4):
        p.e(f"s_add_u32 s{sKV0 + i}, s{sKV0}, {i * 4096}")
    p.e(f"s_mov_b32 s{sRET}, {SPIN}")
    p.e(f"v_bfe_u32 v{t}, v0, 3, 2\nv_lshlrev_b32 v{aK}, 9, v{t}")
    p.e(f"v_and_b32 v{t}, 7, v0\nv_lshl_add_u32 v{aK}, v{t}, 4, v{aK}")
    p.e(f"v_and_b32 v{aV}, 31, v0\nv_lshlrev_b32 v{aV}, 4, v{aV}\nv_lshrrev_b32 v{t}, 5, v0")
    p.e(f"v_lshl_add_u32 v{aK}, v{t}, 7, v{aK}\nv_lshl_add_u32 v{aV}, v{t}, 9, v{aV}\nv_add_u32 v{aV}, 256, v{aV}")
    p.e(f"s_cmp_lg_u32 s{sLAY}, 0\ns_cbranch_scc1 L_a_l2sync")
    p.e(f"v_lshrrev_b32 v{t}, 1, v0\nv_lshlrev_b32 v{t}, 9, v{t}\nv_and_b32 v7, 1, v0\nv_lshl_add_u32 v7, v7, 6, v{t}")
    p.e(f"s_lshl_b32 s80, s{sW}, 14\ns_add_u32 s80, s80, {FLAG1}")
    p.e(f"s_cmp_ge_u32 s{sW}, 4\ns_cbranch_scc1 L_a_b1")
    setup()
    p.waitall()
    flag_store(p, O, aQ, "s79")
    p.e("s_barrier ; PUB")
    p.e(f"s_sleep {OPT.get('d1', 8)}")
    poll(p, "a_f1", f"buffer_load_dword v{t}, v7, {WS}, s80 offen sc1", [t], 81)
    p.e("s_branch L_a_ld")
    p.label("L_a_b1")
    p.e("s_barrier ; PUB")
    prep_compute(p)
    setup()
    poll(p, "a_f2", f"buffer_load_dword v{t}, v7, {WS}, s80 offen sc1", [t], 81)
    flag_store(p, O, aQ, "s79")
    p.e("s_branch L_a_ld")
    p.label("L_a_l2sync")
    setup()
    p.waitall()
    p.bar("PUB")
    p.label("L_a_ld")
    stamp(p, 4)
    for kt in range(8):
        kv_loads(p, kt)
    for i in range(8):
        p.e(f"v_mov_b64 {vr(O + 2 * i, 2)}, 0")
    p.bar("Q0")
    p.e(f"ds_read_b128 {vr(Q, 4)}, v{aQ} offset:{QF}")

    def check(kt):
        p.e(f"v_max3_u32 v{T}, v{K + 4 * kt}, v{V + 8 * kt}, v{V + 8 * kt + 4}")
        p.e(f"v_cmp_eq_u32 vcc, -1, v{T}")
        p.e(f"s_cbranch_vccnz L_a_retry{kt}")
        p.label(f"L_a_back{kt}")
        r = retry
        r.label(f"L_a_retry{kt}")
        r.e(f"s_sub_u32 s{sRET}, s{sRET}, 1\ns_cmp_lt_i32 s{sRET}, 0\ns_cbranch_scc1 L_a_back{kt}")
        r.e("s_sleep 6")
        kv_loads(r, kt)
        r.waitall(lg=False)
        r.e(f"v_max3_u32 v{T}, v{K + 4 * kt}, v{V + 8 * kt}, v{V + 8 * kt + 4}")
        r.e(f"v_cmp_eq_u32 vcc, -1, v{T}")
        r.e(f"s_cbranch_vccnz L_a_retry{kt}\ns_branch L_a_back{kt}")

    def Sb(i):
        return S + 16 * (i & 1)

    def qk(kt):
        p.e(f"v_mfma_f32_32x32x16_bf16 {vr(Sb(kt), 16)}, {vr(K + 4 * kt, 4)}, {vr(Q, 4)}, 0")

    def pv(kt, s):
        p.e(f"v_smfmac_f32_32x32x32_bf16 {vr(O, 16)}, {vr(V + 8 * kt + 4 * s, 4)}, {vr(Sb(kt) + 8 * s, 8)}, v{IDX}")

    def put_partial():
        p.e(f"ds_write_b128 v{aP}, {vr(O, 4)}\nds_write_b128 v{aP}, {vr(O + 4, 4)} offset:1024\nds_write_b32 v{aL}, v{O + 8}")

    check(0)
    qk(0)
    stamp(p, 5)
    for j in range(8):
        for kt in range(8):
            first = j > 0 and kt == 0
            last = j == 7 and kt == 7
            for e in range(16):
                p.e(f"v_exp_f32 v{Sb(kt) + e}, v{Sb(kt) + e}")
                if e == 1 and not (j == 0 and kt == 0): pv((kt - 1) % 8, 1)
                if e == 4 and not last:
                    if j == 0 and kt < 7: check(kt + 1)
                    qk((kt + 1) % 8)
                    if kt == 6 and j < 7:
                        p.e(f"ds_read_b128 {vr(Q, 4)}, v{aQ} offset:{QF + (j + 1) * 1024}")
                if e == (12 if first else 9): pv(kt, 0)
                if e == 8 and first:
                    put_partial()
                    p.e(f"v_mfma_f32_32x32x8bf16_1k {vr(O, 16)}, {vr(aZ, 2)}, {vr(aZ, 2)}, 0")
                    p.e("s_setprio 0")
            if j > 0 and kt == 1:
                p.waitall(vm=False)
                p.bar(f"Y{j}")
            if kt == 5:
                p.bar(f"X{j}")
                p.e("s_setprio 1")
    pv(7, 1)
    put_partial()
    p.waitall(vm=False)
    p.e("s_setprio 0")
    p.bar("Y8")
    stamp(p, 6)
    Yr = O
    p.bar("X8")
    for i in range(4):
        p.e(f"v_mov_b64 {vr(Yr + 2 * i, 2)}, 0")
    p.e(f"s_lshl_b32 s6, s{sW}, 1\nv_add_u32 v{t}, s6, v{aQ}")
    for i in range(8):
        p.e(f"ds_read_u16_d16_hi v{Yr + i}, v{t} offset:{YB + i * 1024}")
    p.e(f"s_mul_i32 s6, s{sW}, {RS}\ns_add_u32 s6, s6, {PB}\nv_lshlrev_b32 v{t + 2}, 5, v0\nv_add_u32 v{t + 2}, s6, v{t + 2}")
    p.e(f"s_lshl_b32 s6, s{sLAY}, 1\ns_add_u32 s6, s6, s{sW}\ns_cmp_ge_u32 s6, 2\ns_cbranch_scc1 L_a_nowkv")
    p.begin_if("wkv1")
    wkv_reads(p)
    p.end_if()
    p.label("L_a_nowkv")
    p.bar("OUT")
    p.e(f"ds_read_b128 {vr(O + 8, 4)}, v{t + 2}\nds_read_b128 {vr(O + 12, 4)}, v{t + 2} offset:16")
    stamp(p, 7)
    for i in range(8):
        p.e(f"v_add_f32 v{X + i}, v{X + i}, v{O + 8 + i}")
    layernorm(p, X, T)
    for i in range(8):
        p.e(f"v_fma_f32 v{O + 8 + i}, v{X + i}, s68, v{T}")
    for i in range(8):
        p.e(f"v_fmac_f32 v{X + i}, v{O + 8 + i}, v{Yr + i}")
    p.e(f"s_cmp_lg_u32 s{sLAY}, 0\ns_cbranch_scc1 L_a_final")
    p.e(f"s_mov_b32 s{sLAY}, 1\ns_add_u32 s{sPUB}, s{sPUB}, {KV2 - KV1}\ns_add_u32 s{sKV0}, s{sKV0}, {KV2 - KV1}")
    if OPT["stamps"]:
        p.e("s_nop 1\nv_mov_b32_dpp v22, v23 row_shr:8 row_mask:0xf bank_mask:0xf\ns_mov_b64 exec, 0xff00\nv_mov_b32 v23, v22\ns_mov_b64 exec, -1")
    p.e("s_branch L_a_layer")
    p.label("L_a_final")
    for i in range(4):
        p.e(f"v_cvt_pk_bf16_f32 v{Q + i}, v{X + 2 * i}, v{X + 2 * i + 1}")
    srd(p, 40, pOUT, 0x200000)
    p.e(f"buffer_store_dwordx4 {vr(Q, 4)}, v{aQ}, {SA}, s70 offen")
    p.e(f"s_or_b32 s6, s{sO}, s{sW}\ns_cmp_lg_u32 s6, 0\ns_cbranch_scc1 L_a_end")
    p.e(f"v_mov_b32 v{t}, s{sEP}\ns_mov_b64 exec, 1")
    p.e(f"buffer_store_dword v{t}, v{aZ}, {WS}, 0 offen")
    p.e("s_mov_b64 exec, -1")
    p.label("L_a_end")
    stamp(p, 0)
    stamp_flush(p)
    if "echo" in OPT:
        p.e("s_add_u32 s94, s94, 7000")
        p.label("L_echo")
        p.e("s_sleep 1\ns_memrealtime s[92:93]")
        p.waitall(vm=False)
        p.e("s_sub_u32 s6, s94, s92\ns_cmp_gt_i32 s6, 0\ns_cbranch_scc1 L_echo")
    p.e("s_endpgm")
    p.ins += retry.ins
    return p


hW, hIDX, hXN, hQW, hPR, hLR, hOW, hMX, hH, hU, hZ = 1, 2, 3, 4, 5, 6, 7, 9, 10, 11, 15
hT0 = 12
OACC, QACC, AF, HT, SACC, RING = 16, 48, 52, 60, 84, 116
sH, sHB, sD, sSO = 56, 57, 58, 59


class Stream:
    def __init__(self, p, frags, slots):
        self.p, self.frags, self.free = p, frags, list(slots)
        self.next_issue = 0
        self.inflight = []
        self.cur_so = None
        self.retired = set()
        self.limit = len(frags)

    def pump(self, maxn=99):
        n = 0
        while self.free and self.next_issue < self.limit and n < maxn:
            off = self.frags[self.next_issue]
            slot = self.free.pop(0)
            base = off & ~4095
            if base != self.cur_so:
                self.p.e(f"s_add_u32 s{sSO}, s{sHB}, {base}")
                self.cur_so = base
            for J in range(2):
                self.p.e(f"buffer_load_dwordx4 {vr(slot + 4 * J, 4)}, v{hW}, {WS}, s{sSO} offen offset:{(off & 4095) + J * 1024} sc1")
            self.inflight.append(slot)
            self.next_issue += 1
            n += 1

    def take(self):
        return self.inflight.pop(0)

    def release(self, slot, pump=True):
        if slot not in self.retired:
            self.free.append(slot)
        if pump:
            self.pump()


def merge(a, b):
    a, b = list(a), list(b)
    i = j = 0
    while i < len(a) or j < len(b):
        if j >= len(b) or (i < len(a) and i * len(b) <= j * len(a)):
            a[i](); i += 1
        else:
            b[j](); j += 1


def helper_wave():
    p = Prog("help")
    p.stampreg = "v8"
    slow = Prog("hslow")
    t = hT0
    p.label("L_helper")
    p.e("s_setprio 3")
    p.e(f"s_sub_u32 s{sH}, s{sW}, 8\ns_lshl_b32 s{sHB}, s{sH}, 14")
    p.e(f"v_lshlrev_b32 v{hW}, 4, v0\nv_mov_b32 v{hZ}, 0")
    p.e(f"s_lshl_b32 s6, s{sO}, 2\ns_load_dword s{sD}, s[{pSD}:{pSD + 1}], s6")
    p.e(f"s_lshr_b32 s70, s{sH}, 1\ns_and_b32 s71, s{sH}, 1\ns_lshl_b32 s6, s{sO}, 1\ns_add_u32 s72, s6, s70")
    p.e(f"s_lshl_b32 s6, s72, 12\ns_add_u32 s52, s{pSK}, s6\ns_addc_u32 s53, s{pSK + 1}, 0\ns_mov_b32 s54, 0x1000\ns_mov_b32 s55, 0x20000")
    p.e(f"s_mul_i32 s73, s{sH}, {2 * CS}\ns_add_u32 s73, s73, {HB}")
    p.e(f"s_mul_i32 s74, s{sH}, 3072\ns_add_u32 s74, s74, {UB}")
    p.e(f"s_lshl_b32 s75, s{sH}, 12\ns_add_u32 s75, s75, {SX}")
    p.e(f"v_and_b32 v30, 31, v0\nv_and_b32 v{t + 1}, 7, v0")
    p.e(f"v_and_b32 v{hIDX}, 1, v0\nv_mul_u32_u24 v{hIDX}, 0xaaaa, v{hIDX}\nv_add_u32 v{hIDX}, 0x4444, v{hIDX}")
    p.e(f"v_lshrrev_b32 v{t}, 4, v0\nv_lshlrev_b32 v{hXN}, 5, v{t}\nv_xor_b32 v{hXN}, v{hXN}, v{hW}")
    p.e(f"v_bfe_u32 v{hQW}, v0, 3, 1\nv_lshlrev_b32 v{hQW}, 9, v{hQW}\nv_lshl_add_u32 v{hQW}, v{t}, 5, v{hQW}")
    p.e(f"v_lshl_add_u32 v{hQW}, v{t + 1}, 1, v{hQW}\ns_lshl_b32 s6, s{sH}, 7\nv_add_u32 v{hQW}, s6, v{hQW}")
    p.e(f"s_lshl_b32 s6, s70, 10\ns_lshl_b32 s7, s71, 3\ns_add_u32 s6, s6, s7\ns_add_u32 s6, s6, {PB}\nv_add_u32 v{hPR}, s6, v{hW}")
    p.e(f"v_lshlrev_b32 v{hLR}, 4, v30")
    p.e(f"v_lshrrev_b32 v{t + 2}, 5, v0\nv_lshlrev_b32 v{hOW}, 5, v30\nv_lshl_add_u32 v{hOW}, v{t + 2}, 4, v{hOW}")
    p.e(f"s_lshl_b32 s6, s{sH}, 2\nv_add_u32 v{hOW}, s6, v{hOW}\nv_mov_b32 v{hMX}, 0")
    p.e(f"v_add_u32 v60, 1, v30\nv_and_b32 v61, 3, v60\nv_sub_u32 v60, v60, v61\nv_mul_u32_u24 v61, {CS}, v61")
    p.e(f"v_lshl_add_u32 v61, v60, 1, v61\nv_lshl_add_u32 v61, v{t + 2}, 4, v61")
    p.e(f"s_mul_i32 s6, s70, {4 * CS}\ns_lshl_b32 s7, s71, 10\ns_add_u32 s6, s6, s7\ns_add_u32 s6, s6, {HB}\nv_add_u32 v{hH}, s6, v61")
    p.e(f"v_sub_u32 v60, 31, v30\nv_lshlrev_b32 v60, 4, v60\nv_mul_u32_u24 v61, 1536, v{t + 2}\nv_add_u32 v60, v60, v61")
    p.e(f"s_mul_i32 s76, s70, 6144\ns_add_u32 s76, s76, {UB}\ns_lshl_b32 s7, s71, 8\ns_add_u32 s6, s76, s7\nv_add_u32 v{hU}, s6, v60")
    p.e(f"v_add_u32 v80, v{t + 2}, v30\ns_lshl_b32 s6, s71, 1\ns_sub_u32 s6, s6, 32\nv_add_u32 v80, s6, v80\nv_lshlrev_b32 v80, 1, v80")
    p.e(f"v_mul_u32_u24 v81, {CS}, v{t + 2}\nv_lshl_add_u32 v81, v30, 1, v81\nv_add_u32 v81, s73, v81")
    p.e(f"v_lshrrev_b32 v166, 3, v0\nv_lshlrev_b32 v166, 14, v166\nv_lshl_add_u32 v166, v{t + 1}, 9, v166")
    p.e(f"s_lshl_b32 s77, s{sH}, 12\ns_add_u32 s77, s77, {FLAG1}")
    p.e(f"v_lshlrev_b32 v167, 9, v30\ns_lshr_b32 s6, s{sO}, 5\ns_lshl_b32 s6, s6, 14\ns_bfe_u32 s7, s{sO}, 0x20003\ns_lshl_b32 s7, s7, 6")
    p.e(f"s_add_u32 s6, s6, s7\ns_add_u32 s79, s6, {FLAG1 + 256}")
    p.waitall(vm=False)
    p.e(f"s_add_u32 s{sEP}, s{sEP}, 0x9e3779b1")
    p.e(f"s_lshl_b32 s6, s{sD}, 16\ns_and_b32 s7, s{sD}, 0xffff0000\ns_cmp_eq_u32 s70, 0\ns_cselect_b32 s{sD}, s6, s7")
    if OPT["stamps"]:
        p.e("v_mov_b32 v8, 0\nv_writelane_b32 v8, s90, 0")
    for i in range(16):
        p.e(f"v_mov_b64 {vr(OACC + 2 * i, 2)}, 0")
    p.e(f"v_add_u32 v61, v61, v{hLR}\nv_add_u32 v61, s74, v61")
    p.e(f"ds_write_b128 v61, {vr(OACC, 4)} offset:1024")
    stamp(p, 1)
    p.bar("XN")
    p.bar("PUB")
    stamp(p, 2)
    poll(p, "h_fw", f"buffer_load_dword v164, v166, {WS}, s77 offen offset:128 sc1\nbuffer_load_dword v165, v166, {WS}, s77 offen offset:192 sc1", [164, 165], 78)
    stamp(p, 3)

    frags = []
    for L in range(2):
        order = ["Q0", "Q1", "Q2", "O0", "Q3", "O1", "Q4", "O2", "Q5", "O3", "Q6", "O4", "Q7", "O5", "O6", "O7"]
        for nm in order:
            base = (WQS if nm[0] == "Q" else WOS) + int(nm[1]) * 65536
            frags += [base + i * 2048 for i in range(8)]
    sacc_slots = [SACC + 8 * i for i in range(4)]
    st = Stream(p, frags, sacc_slots + [RING + 8 * i for i in range(6)])
    st.retired = set(sacc_slots)
    st.limit = 24
    st.pump()

    def qproj(tile):
        def head():
            p.e(f"ds_read_b128 {vr(QACC, 4)}, v{hZ}")
            p.e(f"ds_read_b128 {vr(AF, 4)}, v{hXN} offset:{XN}")
        yield head
        for kb in range(8):
            def step(kb=kb):
                if kb < 7:
                    p.e(f"ds_read_b128 {vr(AF + 4 * ((kb + 1) & 1), 4)}, v{hXN} offset:{XN + (kb + 1) * 1024}")
                s = st.take()
                p.e(f"v_smfmac_f32_16x16x64_bf16 {vr(QACC, 4)}, {vr(AF + 4 * (kb & 1), 4)}, {vr(s, 8)}, v{hIDX}")
                st.release(s)
            yield step

        def fin():
            p.e(f"v_add_f32 v{t}, v{QACC}, v{QACC + 1}\nv_add_f32 v{t + 1}, v{QACC + 2}, v{QACC + 3}")
            p.e(f"v_cvt_pk_bf16_f32 v{t}, v{t}, v{t + 1}")
            p.e(f"ds_write_b16 v{hQW}, v{t} offset:{QF + tile * 1024}\nds_write_b16_d16_hi v{hQW}, v{t} offset:{QF + tile * 1024 + 16}")
        yield fin

    def reduce():
        a, L = HT, HT + 16
        p.e(f"ds_read_b128 {vr(L, 4)}, v{hLR} offset:{LP}\nds_read_b128 {vr(L + 4, 4)}, v{hLR} offset:{LP + 512}")
        for w in range(8):
            p.e(f"ds_read_b64 {vr(a + 2 * w, 2)}, v{hPR} offset:{w * 2048}")
        for i in range(1, 8):
            p.e(f"v_add_f32 v{L}, v{L}, v{L + i}")
        p.e(f"v_rcp_f32 v{L + 1}, v{L}")
        p.waitall(vm=False)
        for w in range(1, 8):
            p.e(f"v_add_f32 v{a}, v{a}, v{a + 2 * w}\nv_add_f32 v{a + 1}, v{a + 1}, v{a + 2 * w + 1}")
        p.e(f"v_mul_f32 v{a}, v{a}, v{L + 1}\nv_mul_f32 v{a + 1}, v{a + 1}, v{L + 1}")
        p.e(f"v_cvt_pk_bf16_f32 v{a}, v{a}, v{a + 1}")
        p.e(f"ds_write_b32 v{hOW}, v{a} offset:{OA}")
        p.e(f"v_max3_f32 v{hMX}, v{hMX}, v{L}, v{L + 1}")

    def oproj(pump=True):
        yield lambda: p.e(f"ds_read_b128 {vr(AF, 4)}, v{hW} offset:{OA}")
        for ct in range(8):
            def step(ct=ct):
                s = st.take()
                p.e(f"v_smfmac_f32_16x16x64_bf16 {vr(OACC + 4 * ct, 4)}, {vr(AF, 4)}, {vr(s, 8)}, v{hIDX}")
                st.release(s, pump)
            yield step

    def ssm(i0, n):
        Al, Ah, B0, B1 = HT, HT + 4, HT + 8, HT + 12
        D0, D1 = SACC, SACC + 16

        def boff(i):
            b8 = 2 * i - 4
            return (b8 & 3) * 1536 + ((b8 >> 2) + 1) * 16

        rAl = lambda i: p.e(f"ds_read_b64 {vr(Al, 2)}, v{hH} offset:{32 * i}\nds_read_b64 {vr(Al + 2, 2)}, v{hH} offset:{32 * i + 8}")
        rAh = lambda i: p.e(f"ds_read_b64 {vr(Ah, 2)}, v{hH} offset:{32 * i + 2048}\nds_read_b64 {vr(Ah + 2, 2)}, v{hH} offset:{32 * i + 2056}")
        rB0 = lambda i: p.e(f"ds_read_b128 {vr(B0, 4)}, v{hU} offset:{boff(i) + 512}")
        rB1 = lambda i: p.e(f"ds_read_b128 {vr(B1, 4)}, v{hU} offset:{boff(i)}")
        if n:
            yield lambda: (rB1(i0), rAl(i0), rB0(i0), rAh(i0))
        for i in range(i0, i0 + n):
            more = i + 1 < i0 + n

            def m1(i=i, more=more):
                p.e(f"v_mfma_f32_32x32x16_bf16 {vr(D1, 16)}, {vr(Al, 4)}, {vr(B1, 4)}, {vr(D1, 16) if i else 0}")
                if more: rB1(i + 1)

            def m2(i=i, more=more):
                p.e(f"v_mfma_f32_32x32x16_bf16 {vr(D0, 16)}, {vr(Al, 4)}, {vr(B0, 4)}, {vr(D0, 16) if i else 0}")
                if more: rAl(i + 1)

            def m3(i=i, more=more):
                p.e(f"v_mfma_f32_32x32x16_bf16 {vr(D1, 16)}, {vr(Ah, 4)}, {vr(B0, 4)}, {vr(D1, 16)}")
                if more: rB0(i + 1); rAh(i + 1)
            yield m1
            yield m2
            yield m3

    def ssm_send():
        p.e(f"v_add_u32 v{t}, s75, v{hW}")
        p.e("s_nop 7\ns_nop 3")
        p.waitall(vm=False)
        p.e("s_cmp_eq_u32 s71, 0\ns_cbranch_scc1 L_h_s0")
        for i in range(4):
            p.e(f"ds_write_b128 v{t}, {vr(SACC + 4 * i, 4)} offset:{i * 1024}")
        p.e("s_branch L_h_s1")
        p.label("L_h_s0")
        for i in range(4):
            p.e(f"ds_write_b128 v{t}, {vr(SACC + 16 + 4 * i, 4)} offset:{i * 1024}")
        p.label("L_h_s1")
        p.waitall(vm=False)

    def ssm_finish():
        R = HT
        p.e(f"s_xor_b32 s6, s75, 0x1000\nv_add_u32 v{t}, s6, v{hW}")
        for i in range(4):
            p.e(f"ds_read_b128 {vr(R + 4 * i, 4)}, v{t} offset:{i * 1024}")
        p.e(f"v_and_b32 v{t + 1}, 31, v0\nv_lshrrev_b32 v{t + 2}, 5, v0\nv_lshl_add_u32 v164, v{t + 2}, 3, v{hLR}")
        p.e(f"s_lshl_b32 s7, s71, 9\ns_sub_u32 s7, s76, s7\ns_add_u32 s7, s7, {63 * 16 + 8}\nv_sub_u32 v164, s7, v164")
        for b in range(4):
            p.e(f"ds_read_b64 {vr(R + 16 + 2 * b, 2)}, v164 offset:{(3 - b) * 1536}")
        p.waitall(vm=False)
        p.e("s_cmp_eq_u32 s71, 0\ns_cbranch_scc1 L_h_f0")
        for i in range(16):
            p.e(f"v_add_f32 v{R + i}, v{R + i}, v{SACC + 16 + i}")
        p.e("s_branch L_h_f1")
        p.label("L_h_f0")
        for i in range(16):
            p.e(f"v_add_f32 v{R + i}, v{R + i}, v{SACC + i}")
        p.label("L_h_f1")
        for b in range(4):
            u0, u1 = R + 16 + 2 * b, R + 17 + 2 * b
            p.e(f"v_and_b32 v165, 0xffff0000, v{u1}\nv_fmac_f32 v{R + 4 * b}, s{sD}, v165")
            p.e(f"v_lshlrev_b32 v165, 16, v{u1}\nv_fmac_f32 v{R + 4 * b + 1}, s{sD}, v165")
            p.e(f"v_and_b32 v165, 0xffff0000, v{u0}\nv_fmac_f32 v{R + 4 * b + 2}, s{sD}, v165")
            p.e(f"v_lshlrev_b32 v165, 16, v{u0}\nv_fmac_f32 v{R + 4 * b + 3}, s{sD}, v165")
            p.e(f"v_cvt_pk_bf16_f32 v{R + 4 * b}, v{R + 4 * b}, v{R + 4 * b + 1}\nv_cvt_pk_bf16_f32 v{R + 4 * b + 1}, v{R + 4 * b + 2}, v{R + 4 * b + 3}")
        p.e(f"v_mul_u32_u24 v164, 80, v{t + 1}\nv_lshl_add_u32 v164, v{t + 2}, 3, v164\nv_add_u32 v164, s6, v164")
        for b in range(4):
            p.e(f"ds_write_b64 v164, {vr(R + 4 * b, 2)} offset:{b * 16}")
        p.e("v_lshrrev_b32 v164, 2, v0\nv_mul_u32_u24 v164, 80, v164\nv_and_b32 v165, 3, v0\nv_lshl_add_u32 v164, v165, 4, v164\nv_add_u32 v164, s6, v164")
        p.e(f"ds_read_b128 {vr(R, 4)}, v164\nds_read_b128 {vr(R + 4, 4)}, v164 offset:1280")
        p.e(f"s_lshl_b32 s6, s72, 12\ns_lshl_b32 s7, s71, 11\ns_add_u32 s6, s6, s7\ns_add_u32 s6, s6, {YT}")
        p.e(f"buffer_store_dwordx4 {vr(R, 4)}, v{hW}, {WS}, s6 offen sc1")
        return p.e(f"buffer_store_dwordx4 {vr(R + 4, 4)}, v{hW}, {WS}, s6 offen offset:1024 sc1")

    def checked(name, load, regs):
        for i, r in enumerate(regs):
            if i == 0:
                p.e(f"v_cmp_ne_u32 vcc, s{sEP}, v{r}")
            else:
                p.e(f"v_cmp_ne_u32 s[6:7], s{sEP}, v{r}\ns_or_b64 vcc, vcc, s[6:7]")
        p.e(f"s_cbranch_vccnz L_{name}_slow")
        p.label(f"L_{name}_back")
        slow.label(f"L_{name}_slow")
        poll(slow, name, load, regs, 78)
        slow.e(f"s_branch L_{name}_back")

    det = [16]
    cur = [0]

    def sync(name):
        p.waitall(vm=False)
        d = OPT["stamps"] and OPT.get("detail", 0) == cur[0]
        if d:
            stamp(p, det[0]); det[0] += 1
        p.bar(name)
        if d:
            stamp(p, det[0]); det[0] += 1

    for L in range(2):
        cur[0] = L
        merge(qproj(0), [])
        stamp(p, 4 + 8 * L)
        if L == 1:
            p.bar("PUB")
        sync("Q0")
        merge(qproj(1), [])
        if L == 0:
            for ce in range(2):
                p.e(f"s_add_u32 m0, s73, {ce * CS + 64}\ns_lshl_b32 s6, s71, 2\ns_add_u32 s6, s6, {2 * ce}")
                for i in range(4):
                    p.e(f"buffer_load_dwordx4 v{hW}, s[52:55], s6 offen offset:{i * 1024} lds")
            p.e("buffer_load_ushort v80, v80, s[52:55], 0 offen")
            uload = (f"buffer_load_dword v164, v167, {WS}, s79 offen sc1\nbuffer_load_dword v165, v166, {WS}, s77 offen offset:256 sc1\n"
                     f"buffer_load_dword v82, v166, {WS}, s77 offen offset:320 sc1")
        sync("X0")
        if L == 0:
            p.e(uload)
            p.e("ds_write_b16 v81, v80")
            checked("h_fu", uload, [164, 165, 82])
            p.e(f"v_lshlrev_b32 v165, 6, v0\ns_lshl_b32 s6, s72, 12\ns_lshl_b32 s7, s71, 5\ns_add_u32 s6, s6, s7\ns_add_u32 s6, s6, {UR}\ns_add_u32 s7, s6, 16")
            p.e("s_mov_b32 m0, s74")
            p.e(f"buffer_load_dwordx4 v165, {WS}, s6 offen sc1 lds")
            p.e("s_add_u32 m0, s74, 1536")
            p.wait(p.e(f"buffer_load_dwordx4 v165, {WS}, s7 offen sc1 lds"))
            st.limit = len(frags)
        sync("Y1")
        for j in range(1, 8):
            reduce()
            merge(qproj(j + 1) if j < 7 else [], ssm(8 * j - 8, 4) if L == 0 and j <= 4 else [])
            if L == 0 and j == 5:
                ytok = ssm_finish()
                st.retired = set()
                st.free += sacc_slots
                st.pump()
            if L == 0 and j == 7:
                checked("h_fy", yload, [164, 165])
                p.e(f"v_lshlrev_b32 v166, 15, v0\ns_lshl_b32 s6, s{sH}, 13\ns_lshl_b32 s7, s{sO}, 4\ns_add_u32 s6, s6, s7\ns_add_u32 s6, s6, {YT}\ns_add_u32 s7, s6, 4096")
                p.e(f"s_lshl_b32 s80, s{sH}, 11\ns_add_u32 m0, s80, {YB}")
                p.e(f"buffer_load_dwordx4 v166, {WS}, s6 offen sc1 lds")
                p.e(f"s_add_u32 m0, s80, {YB + 1024}")
                gtok = p.e(f"buffer_load_dwordx4 v166, {WS}, s7 offen sc1 lds")
            sync(f"X{j}")
            merge(oproj(), ssm(8 * j - 4, 4) if L == 0 and j <= 4 else [])
            if L == 0 and j == 4:
                ssm_send()
            if L == 0 and j == 5:
                p.wait(ytok)
                p.e("s_and_b32 s6, s72, 7\ns_lshl_b32 s6, s6, 12\ns_lshr_b32 s7, s72, 3\ns_lshl_b32 s7, s7, 6\ns_add_u32 s6, s6, s7")
                p.e(f"s_lshl_b32 s7, s71, 15\ns_add_u32 s6, s6, s7\ns_add_u32 s6, s6, {FLAG2}")
                flag_store(p, HT, hW, "s6")
            if L == 0 and j == 6:
                p.e(f"v_lshlrev_b32 v167, 6, v0\ns_lshr_b32 s6, s{sO}, 7\ns_lshl_b32 s6, s6, 15\ns_lshl_b32 s7, s{sH}, 13\ns_add_u32 s6, s6, s7\ns_add_u32 s79, s6, {FLAG2}\ns_add_u32 s81, s79, 4096")
                yload = f"buffer_load_dword v164, v167, {WS}, s79 offen sc1\nbuffer_load_dword v165, v167, {WS}, s81 offen sc1"
                p.e(yload)
            if j == 7:
                p.e(f"v_lshrrev_b32 v{t}, 4, v0\nv_mul_u32_u24 v{t}, {2 * RS}, v{t}\nv_and_b32 v{t + 1}, 15, v0\nv_lshl_add_u32 v{t}, v{t + 1}, 5, v{t}")
                p.e(f"s_lshl_b32 s6, s{sH}, 9\ns_add_u32 s6, s6, {PB}\nv_add_u32 v{t}, s6, v{t}")
            sync(f"Y{j + 1}")
        reduce()
        if L == 0:
            p.wait(gtok)
        sync("X8")
        merge(oproj(pump=False), [])
        for ct in range(8):
            p.e(f"v_add_f32 v{HT + ct}, v{OACC + 4 * ct}, v{OACC + 4 * ct + 1}\nv_add_f32 v{HT + 8 + ct}, v{OACC + 4 * ct + 2}, v{OACC + 4 * ct + 3}")
            if ct == 3:
                p.e(f"ds_write_b128 v{t}, {vr(HT, 4)}\nds_write_b128 v{t}, {vr(HT + 8, 4)} offset:{RS}")
        p.e(f"ds_write_b128 v{t}, {vr(HT + 4, 4)} offset:16\nds_write_b128 v{t}, {vr(HT + 12, 4)} offset:{RS + 16}")
        sync("OUT")
        if L == 0:
            st.pump()
            for i in range(16):
                p.e(f"v_mov_b64 {vr(OACC + 2 * i, 2)}, 0")
            p.bar("XN")
    stamp_flush(p)
    p.e("s_endpgm")
    p.ins += slow.ins
    return p


def main():
    ref = open(f"cdna_kernels/{NAME}.s.ref").read()
    head = [l for l in ref.split("\n") if l.startswith(";") and "@launch" not in l]
    pro, att, hel = prologue(), attention_wave(), helper_wave()
    assert att.bars + att.bars == hel.bars, (att.bars, hel.bars)
    out = "\n".join(head) + f"\n; @launch grid=(256,1,1) block=(768,1,1) lds={LDS_SIZE}\n"
    out += f""".amdgcn_target "amdgcn-amd-amdhsa--gfx950"
.text
.globl {NAME}_kernel
.p2align 8
.type {NAME}_kernel,@function
{NAME}_kernel:
"""
    out += pro.text() + att.text() + hel.text() + "L_exit:\n    s_endpgm\n"
    out += f""".section .rodata,"a"
.p2align 6
.amdhsa_kernel {NAME}_kernel
  .amdhsa_next_free_vgpr 168
  .amdhsa_next_free_sgpr 96
  .amdhsa_accum_offset 168
  .amdhsa_group_segment_fixed_size 0
  .amdhsa_kernarg_size 112
  .amdhsa_user_sgpr_count 2
  .amdhsa_user_sgpr_kernarg_segment_ptr 1
  .amdhsa_system_sgpr_workgroup_id_x 1
.end_amdhsa_kernel
"""
    open(sys.argv[1], "w").write(out)
    print("nops added:", pro.nops_added, att.nops_added, hel.nops_added, "instr:", len(att.ins), len(hel.ins))


main()
```

```python
import sys, os
sys.path.insert(0, os.path.dirname(os.path.abspath(__file__)))
from asmlib import Prog

NAME = "interleave_layers__grouped_kv_mqa__ssm_conv_h3__prompt"
OPT = dict(stamps=0)
for a in sys.argv[2:]:
    k, v = a.split("=")
    OPT[k] = int(v)

EPOCH = 0
FLAGC = 0x8000
FLAGQ = 0x4000
FLAGO = 0x6000
FLAGU = 0x50000
FLAG2 = 0x58000
KV1 = 0x10000
KV2 = 0x30000
WQS = 0x100000
WOS = 0x180000
UR = 0x200000
YT = 0x400000
STAMP = 0x600000
WS_SIZE = 0x700000
ZP = 0
QRDY = 0x40
KVST = 0x100
QF = 0x400
OA = 0x2400
LP = 0x2800
XN = 0x2C00
YB = 0x4C00
PB = 0x6C00
RS = 2080
WKV = 0xAE00
SX = 0x13000
UB = 0x17000
HB = 0x1A000
CS = 4160
WQN = UB
LDS_SIZE = 0x27000
SPIN = 20000
SCALE = 0x3EB8AA3B

sW, sO, sEP = 3, 4, 5
pX, pWQ, pWK, pWV, pWO, pBK, pBV, pSH, pSK, pSD, pOUT, pDBG, pWS = 8, 10, 12, 14, 16, 20, 22, 24, 26, 28, 30, 32, 34
WS = "s[36:39]"
SA, SB, SC = "s[40:43]", "s[44:47]", "s[48:51]"


def vr(a, n=1):
    return f"v{a}" if n == 1 else f"v[{a}:{a + n - 1}]"


def srd(p, base, ptr, size):
    p.e(f"s_mov_b32 s{base}, s{ptr}\ns_mov_b32 s{base + 1}, s{ptr + 1}\ns_mov_b32 s{base + 2}, {size}\ns_mov_b32 s{base + 3}, 0x20000")


_st = [0]


def stamp(p, idx):
    if "echo" in OPT and p.name == "attn" and OPT["echo"] % 8 == idx and OPT["echo"] >= 0:
        p.waitall(vm=False)
        p.e("s_memrealtime s[92:93]")
        p.waitall(vm=False)
        p.e(f"s_cmp_eq_u32 s56, {OPT['echo'] // 8}\ns_cselect_b32 s94, s92, s94")
    if not OPT["stamps"]:
        return
    p.waitall(vm=False)
    p.e("s_memrealtime s[92:93]")
    p.waitall(vm=False)
    p.e(f"v_writelane_b32 {p.stampreg}, s92, {idx}")


def stamp_flush(p):
    if not OPT["stamps"]:
        return
    p.e(f"s_mul_i32 s92, s{sO}, 12\ns_add_u32 s92, s92, s{sW}\ns_lshl_b32 s92, s92, 8\ns_add_u32 s92, s92, {STAMP}")
    p.e("v_lshlrev_b32 v1, 2, v0")
    p.e(f"buffer_store_dword {p.stampreg}, v1, {WS}, s92 offen")


def poll(p, name, load, regs, tmp_s):
    p.e(f"s_mov_b32 s{tmp_s}, {SPIN}")
    p.label(f"L_{name}")
    p.e(load)
    p.waitall(lg=False)
    for i, r in enumerate(regs):
        if i == 0:
            p.e(f"v_cmp_ne_u32 vcc, s{sEP}, v{r}")
        else:
            p.e(f"v_cmp_ne_u32 s[6:7], s{sEP}, v{r}\ns_or_b64 vcc, vcc, s[6:7]")
    p.e(f"s_cbranch_vccz L_{name}_ok")
    p.e(f"s_sleep 8\ns_sub_u32 s{tmp_s}, s{tmp_s}, 1\ns_cmp_lg_u32 s{tmp_s}, 0\ns_cbranch_scc1 L_{name}")
    p.label(f"L_{name}_ok")


def flag_store(p, t4, va, so, lanes=3):
    for i in range(4):
        p.e(f"v_mov_b32 v{t4 + i}, s{sEP}")
    p.e(f"s_mov_b64 exec, {lanes}")
    p.e(f"buffer_store_dwordx4 {vr(t4, 4)}, v{va}, {WS}, {so} offen sc1")
    p.e("s_mov_b64 exec, -1")


def prologue():
    p = Prog("pro")
    p.e("s_cmp_ge_u32 s2, 256\ns_cbranch_scc1 L_exit")
    if OPT["stamps"] or "echo" in OPT:
        p.e("s_memrealtime s[90:91]")
    p.e("s_load_dwordx16 s[8:23], s[0:1], 0\ns_load_dwordx8 s[24:31], s[0:1], 64\ns_load_dwordx4 s[32:35], s[0:1], 96")
    p.e("v_lshrrev_b32 v1, 6, v0\nv_and_b32 v0, 63, v0")
    p.e(f"v_readfirstlane_b32 s{sW}, v1")
    p.e(f"s_and_b32 s6, s2, 7\ns_lshl_b32 s6, s6, 5\ns_lshr_b32 s7, s2, 3\ns_add_u32 s{sO}, s6, s7")
    p.waitall(vm=False)
    p.e(f"s_load_dword s{sEP}, s[{pWS}:{pWS + 1}], {EPOCH}")
    srd(p, 36, pWS, WS_SIZE)
    p.e(f"s_cmp_ge_u32 s{sW}, 8\ns_cbranch_scc1 L_helper")
    return p


aL, aZ, aQ, aP, IDX = 1, 2, 4, 5, 6
X, Q, T, O, S, K, V = 8, 16, 20, 24, 40, 72, 104
aK, aV = T + 1, T + 2
sLAY, sKV0, sPUB, sSC, sRET = 56, 64, 58, 59, 57
MLO, MHI = "s[60:61]", "s[62:63]"


def layernorm(p, x, t):
    s, q = t, t + 1
    p.e(f"v_add_f32 v{s}, v{x}, v{x + 1}\nv_mul_f32 v{q}, v{x}, v{x}")
    p.e(f"v_fmac_f32 v{q}, v{x + 1}, v{x + 1}")
    for i in range(2, 8):
        p.e(f"v_add_f32 v{s}, v{s}, v{x + i}\nv_fmac_f32 v{q}, v{x + i}, v{x + i}")
    for m in ("quad_perm:[1,0,3,2] row_mask:0xf", "quad_perm:[2,3,0,1] row_mask:0xf", "row_half_mirror row_mask:0xf",
              "row_mirror row_mask:0xf", "row_bcast:15 row_mask:0xa", "row_bcast:31 row_mask:0xc"):
        p.e(f"v_add_f32_dpp v{s}, v{s}, v{s} {m} bank_mask:0xf")
        p.e(f"v_add_f32_dpp v{q}, v{q}, v{q} {m} bank_mask:0xf")
    p.e(f"v_mul_f32 v{s}, 0x3b000000, v{s}\nv_mul_f32 v{q}, 0x3b000000, v{q}")
    p.e(f"v_fma_f32 v{q}, -v{s}, v{s}, v{q}\nv_max_f32 v{q}, 0, v{q}\nv_add_f32 v{q}, 0x3727c5ac, v{q}")
    p.e(f"v_rsq_f32 v{q}, v{q}")
    p.e(f"v_mul_f32_e64 v{s}, -v{s}, v{q}")
    p.e(f"v_readlane_b32 s68, v{q}, 63\nv_readlane_b32 s69, v{s}, 63")
    p.e(f"v_mov_b32 v{s}, s69")


def wkv_reads(p):
    t = T
    p.e(f"v_lshrrev_b32 v{t}, 5, v0\nv_lshlrev_b32 v{t}, 4, v{t}")
    p.e(f"v_bfe_u32 v{t + 1}, v0, 4, 1\nv_lshl_add_u32 v{t}, v{t + 1}, 2, v{t}")
    p.e(f"v_bfe_u32 v{t + 1}, v0, 3, 1\nv_lshl_add_u32 v{t}, v{t + 1}, 3, v{t}")
    p.e(f"v_bfe_u32 v{t + 1}, v0, 2, 1\nv_add_u32 v{t}, v{t}, v{t + 1}")
    p.e(f"v_and_b32 v{t + 1}, 3, v0\nv_lshlrev_b32 v{t + 1}, 3, v{t + 1}\nv_lshl_add_u32 v{t}, v{t}, 5, v{t + 1}")
    p.e(f"s_lshl_b32 s6, s{sW}, 14\ns_add_u32 s6, s6, {WKV}\nv_add_u32 v{t}, s6, v{t}")
    for kb in range(8):
        for a in range(4):
            off = (64 * kb + 32 * (a >> 1) + 2 * (a & 1)) * 32
            p.e(f"ds_read_b64_tr_b16 {vr(S + 8 * kb + 2 * a, 2)}, v{t} offset:{off}")


def kv_loads(p, kt):
    so = f"s{sKV0 + (kt >> 1)}"
    im = (kt & 1) * 2048
    p.e(f"buffer_load_dwordx4 {vr(K + 4 * kt, 4)}, v{aK}, {WS}, {so} offen offset:{im} sc1")
    p.e(f"buffer_load_dwordx4 {vr(V + 8 * kt, 4)}, v{aV}, {WS}, {so} offen offset:{im} sc1")


def w_gather(p):
    p.e("v_and_b32 v57, 15, v0\nv_lshrrev_b32 v58, 4, v0")
    p.e(f"s_bfe_u32 s6, s{sO}, 0x20003\ns_lshr_b32 s7, s{sO}, 5\ns_and_b32 s78, s{sO}, 7")
    p.e(f"s_lshl_b32 s79, s6, 6\ns_lshl_b32 s72, s7, 3\ns_add_u32 s79, s79, s72\ns_add_u32 s79, s79, s78\ns_lshl_b32 s79, s79, 5")
    p.e(f"s_cmp_eq_u32 s{sW}, 3\ns_cbranch_scc1 L_a_wo")
    srd(p, 44, pWQ, 0x80000)
    p.e("v_lshrrev_b32 v59, 5, v0\nv_lshlrev_b32 v56, 14, v59\nv_and_b32 v59, 1, v58\nv_lshl_add_u32 v56, v59, 12, v56\nv_lshl_add_u32 v56, v57, 1, v56")
    p.e(f"s_lshl_b32 s72, s78, 16\ns_lshr_b32 s6, s{sO}, 3\ns_lshl_b32 s6, s6, 5\ns_add_u32 s72, s72, s6")
    p.e("s_add_u32 s73, s72, 8192\ns_add_u32 s74, s72, 32768\ns_add_u32 s75, s72, 40960")
    p.e(f"v_mov_b32 v103, v{aQ}\ns_lshl_b32 s76, s{sO}, 11\ns_add_u32 s76, s76, {WQS}\ns_add_u32 s77, s76, 1024\ns_add_u32 s79, s79, {FLAGQ}")
    p.e("s_branch L_a_wg")
    p.label("L_a_wo")
    srd(p, 44, pWO, 0x80000)
    p.e("v_lshlrev_b32 v57, 4, v57\nv_lshl_add_u32 v103, v58, 11, v57\nv_lshl_add_u32 v56, v58, 1, v57")
    p.e("s_lshl_b32 s72, s7, 16\ns_lshl_b32 s73, s78, 13\ns_add_u32 s72, s72, s73\ns_lshl_b32 s73, s6, 8\ns_add_u32 s72, s72, s73")
    p.e("s_add_u32 s73, s72, 4096\ns_add_u32 s74, s72, 8\ns_add_u32 s75, s72, 4104")
    p.e("s_lshl_b32 s76, s7, 16\ns_lshl_b32 s6, s6, 14\ns_add_u32 s76, s76, s6\ns_lshl_b32 s6, s78, 8\ns_add_u32 s76, s76, s6")
    p.e(f"s_add_u32 s76, s76, {WOS}\ns_add_u32 s77, s76, 8192\ns_add_u32 s79, s79, {FLAGO}")
    p.label("L_a_wg")
    for hf in range(2):
        for j in range(4):
            for e in range(2):
                p.e(f"buffer_load_ushort v{40 + 8 * hf + 2 * j + e}, v56, {SB}, s{72 + 2 * hf + (j & 1)} offen offset:{(2 * (j >> 1) + e) * 1024}")


KR, VR, SH, PW, KU, PU, PO, WG = 40, 51, 60, 64, 69, 80, 88, 104


def prep_loads(p):
    srd(p, 44, pBK, 0x200000)
    srd(p, 48, pBV, 0x200000)
    srd(p, 52, pSH, 0x1000)
    p.e(f"s_sub_u32 s71, s{sW}, 4")
    p.e("v_lshrrev_b32 v96, 3, v0\nv_and_b32 v97, 7, v0")
    p.e("v_lshlrev_b32 v98, 13, v96\nv_lshl_add_u32 v98, v97, 2, v98")
    p.e(f"s_and_b32 s72, s{sO}, 31\ns_lshr_b32 s73, s{sO}, 5")
    p.e("s_lshl_b32 s6, s72, 16\ns_lshl_b32 s7, s73, 7\ns_add_u32 s6, s6, s7\ns_lshl_b32 s7, s71, 5\ns_add_u32 s74, s6, s7\ns_add_u32 s75, s74, 4096")
    p.e("s_sub_u32 s6, s74, 3072\nv_add_u32 v99, s6, v98")
    p.e("s_lshl_b32 s6, s73, 9\ns_lshl_b32 s7, s71, 7\ns_add_u32 s6, s6, s7\nv_lshlrev_b32 v100, 4, v97")
    p.e(f"buffer_load_dwordx4 {vr(SH, 4)}, v100, s[52:55], s6 offen")
    for r in range(3):
        p.e(f"buffer_load_dword v{KR + r}, v99, {SB}, 0 offen offset:{r * 1024}")
    for r in range(8):
        p.e(f"buffer_load_dword v{KR + 3 + r}, v98, {SB}, s{74 + (r >> 2)} offen offset:{(r & 3) * 1024}")
    for r in range(8):
        p.e(f"buffer_load_dword v{VR + r}, v98, {SC}, s{74 + (r >> 2)} offen offset:{(r & 3) * 1024}")


def prep_compute(p):
    p.waitall(lg=False)
    for c in range(2):
        un = (lambda d, s: f"v_lshlrev_b32 v{d}, 16, v{s}") if c == 0 else (lambda d, s: f"v_and_b32 v{d}, 0xffff0000, v{s}")
        for j in range(2):
            p.e(f"v_lshlrev_b32 v{PW + 2 * j}, 16, v{SH + 2 * c + j}\nv_and_b32 v{PW + 2 * j + 1}, 0xffff0000, v{SH + 2 * c + j}")
        for r in range(11):
            p.e(un(KU + r, KR + r))
        for r in range(8):
            p.e(f"v_mul_f32 v{PU + r}, v{PW}, v{KU + 3 + r}")
            for j in range(1, 4):
                p.e(f"v_fmac_f32 v{PU + r}, v{PW + j}, v{KU + 3 + r - j}")
            p.e(un(PW + 4, VR + r))
            p.e(f"v_mul_f32 v{PU + r}, v{PU + r}, v{PW + 4}")
        for i in range(4):
            p.e(f"v_cvt_pk_bf16_f32 v{PO + 4 * c + i}, v{PU + 7 - 2 * i}, v{PU + 6 - 2 * i}")
    p.e("v_xor_b32 v98, 7, v96\nv_xor_b32 v98, v98, v97\nv_lshlrev_b32 v98, 4, v98\nv_lshl_add_u32 v98, v97, 8, v98")
    p.e(f"s_lshl_b32 s74, s71, 12\ns_add_u32 s74, s74, {SX}\nv_add_u32 v98, s74, v98")
    p.e(f"ds_write_b128 v98, {vr(PO, 4)}\nds_write_b128 v98, {vr(PO + 4, 4)} offset:128")


def attention_wave():
    p = Prog("attn")
    p.stampreg = "v23"
    retry = Prog("retry")
    t = T
    srd(p, 40, pX, 0x200000)
    p.e(f"v_lshlrev_b32 v{aQ}, 4, v0\nv_mov_b32 v103, 0")
    p.e(f"s_lshl_b32 s6, s{sO}, 3\ns_add_u32 s6, s6, s{sW}\ns_lshl_b32 s70, s6, 10")
    p.e(f"buffer_load_dwordx4 {vr(Q, 4)}, v{aQ}, {SA}, s70 offen")
    p.e(f"s_cmp_ge_u32 s{sW}, 4\ns_cbranch_scc1 L_a_nodma")
    p.e(f"s_cmp_ge_u32 s{sW}, 2\ns_cbranch_scc1 L_a_wq")
    p.e(f"s_cmp_eq_u32 s{sW}, 0")
    p.e(f"s_cselect_b32 s44, s{pWK}, s{pWV}\ns_cselect_b32 s45, s{pWK + 1}, s{pWV + 1}\ns_mov_b32 s46, 0x4000\ns_mov_b32 s47, 0x20000")
    p.e(f"s_lshl_b32 s6, s{sW}, 14\ns_add_u32 s6, s6, {WKV}")
    for i in range(4):
        p.e(f"s_add_u32 m0, s6, {i * 4096}\ns_mov_b32 s7, {i * 4096}")
        for j in range(4):
            p.e(f"buffer_load_dwordx4 v{aQ}, {SB}, s7 offen offset:{j * 1024} lds")
    p.e("s_branch L_a_nodma")
    p.label("L_a_wq")
    w_gather(p)
    p.label("L_a_nodma")
    p.e(f"s_lshl_b32 s6, s{sO}, 9\ns_lshl_b32 s7, s{sW}, 8\ns_add_u32 s{sPUB}, s6, s7\ns_add_u32 s{sPUB}, s{sPUB}, {KV1}")
    p.e(f"s_cmp_eq_u32 s{sW}, 0\ns_cselect_b32 s{sSC}, {SCALE}, 1.0")
    p.e(f"v_and_b32 v{t + 1}, 31, v0\nv_lshlrev_b32 v{t + 2}, 4, v{t + 1}")
    p.e(f"v_mov_b32 v{IDX}, 0xdddd\nv_mov_b32 v{aZ}, 0\nv_mov_b32 v{aZ + 1}, 0")
    p.e(f"s_lshl_b32 s6, s{sW}, 11\ns_add_u32 s6, s6, {PB}\nv_add_u32 v{aP}, s6, v{aQ}")
    p.e(f"s_lshr_b32 s6, s{sW}, 2\ns_lshl_b32 s6, s6, 9\ns_and_b32 s7, s{sW}, 3\ns_lshl_b32 s7, s7, 2\ns_add_u32 s6, s6, s7\ns_add_u32 s6, s6, {LP}")
    p.e(f"v_add_u32 v{aL}, s6, v{t + 2}")
    p.e(f"s_mov_b32 s{sLAY}, 0\ns_lshl_b32 s6, s{sW}, 14\ns_add_u32 s{sKV0}, s6, {KV1}")
    if OPT["stamps"]:
        p.e("v_mov_b32 v23, 0\nv_writelane_b32 v23, s90, 0")
    if "echo" in OPT:
        p.e("s_mov_b32 s94, s90")
    p.waitall()
    p.e(f"s_add_u32 s{sEP}, s{sEP}, 0x9e3779b1")
    stamp(p, 1)
    p.e(f"ds_write_b64 v{aZ}, {vr(aZ, 2)}\nds_write_b64 v{aZ}, {vr(aZ, 2)} offset:8")
    p.e(f"ds_write_b64 v{aZ}, {vr(aZ, 2)} offset:{QRDY}\nds_write_b64 v{aZ}, {vr(aZ, 2)} offset:{QRDY + 8}")
    p.e(f"s_cmp_ge_u32 s{sW}, 4\ns_cbranch_scc1 L_a_r4")
    p.e(f"s_cmp_ge_u32 s{sW}, 2\ns_cbranch_scc1 L_a_r2")
    wkv_reads(p)
    p.e("s_branch L_a_r")
    p.label("L_a_r2")
    for hf in range(2):
        for j in range(4):
            p.e(f"v_lshl_or_b32 v{60 + 4 * hf + j}, v{41 + 8 * hf + 2 * j}, 16, v{40 + 8 * hf + 2 * j}")
        p.e(f"buffer_store_dwordx4 {vr(60 + 4 * hf, 4)}, v103, {WS}, s{76 + hf} offen sc1")
    p.e("s_branch L_a_r")
    p.label("L_a_r4")
    if OPT.get("tau", 0) == 0:
        prep_loads(p)
    p.label("L_a_r")
    p.q["vm"] = []
    p.pend = {}
    for i in range(4):
        p.e(f"v_lshlrev_b32 v{X + 2 * i}, 16, v{Q + i}\nv_and_b32 v{X + 2 * i + 1}, 0xffff0000, v{Q + i}")
    p.label("L_a_layer")
    layernorm(p, X, T)
    for i in range(8):
        p.e(f"v_fma_f32 v{O + i}, v{X + i}, s68, v{T}")
    for i in range(4):
        p.e(f"v_cvt_pk_bf16_f32 v{Q + i}, v{O + 2 * i}, v{O + 2 * i + 1}")
    p.e(f"v_bfe_u32 v{t}, v0, 1, 2\nv_xor_b32 v{t + 1}, s{sW}, v{t}\nv_lshlrev_b32 v{t + 1}, 5, v{t + 1}")
    p.e(f"v_lshl_add_u32 v{t + 1}, v{t}, 8, v{t + 1}\nv_and_b32 v{t}, 1, v0\nv_lshl_add_u32 v{t + 1}, v{t}, 4, v{t + 1}")
    p.e(f"v_lshrrev_b32 v{t}, 3, v0\nv_lshl_add_u32 v{t + 1}, v{t}, 10, v{t + 1}")
    p.e(f"ds_write_b128 v{t + 1}, {vr(Q, 4)} offset:{XN}")
    p.waitall(vm=False)
    p.bar("XN")
    stamp(p, 2)
    p.e(f"s_cmp_ge_u32 s{sW}, 2\ns_cbranch_scc1 L_a_nokv")
    p.begin_if("kv")
    p.e(f"v_lshrrev_b32 v{t}, 4, v0\nv_lshlrev_b32 v{t + 1}, 5, v{t}\nv_xor_b32 v{t + 1}, v{t + 1}, v{aQ}")
    for kb in range(8):
        p.e(f"ds_read_b128 {vr(V + 4 * kb, 4)}, v{t + 1} offset:{XN + kb * 1024}")
    p.e(f"v_and_b32 v{t + 2}, 1, v0\nv_mul_u32_u24 v{t + 2}, 0xaaaa, v{t + 2}\nv_add_u32 v{t + 2}, 0x4444, v{t + 2}")
    p.e(f"v_mov_b64 {vr(O, 2)}, 0\nv_mov_b64 {vr(O + 2, 2)}, 0")
    p.e(f"v_bfe_u32 v{O + 4}, v0, 3, 1\nv_lshlrev_b32 v{O + 4}, 7, v{O + 4}\nv_lshl_add_u32 v{O + 4}, v{t}, 5, v{O + 4}")
    p.e(f"v_and_b32 v{O + 5}, 7, v0\nv_lshl_add_u32 v{O + 4}, v{O + 5}, 1, v{O + 4}\nv_add_u32 v{O + 5}, 16, v{O + 4}")
    p.e(f"s_cmp_eq_u32 s{sW}, 0\ns_cbranch_scc1 L_a_isk")
    p.e(f"v_and_b32 v{O + 4}, 15, v0\nv_lshlrev_b32 v{O + 4}, 4, v{O + 4}\nv_lshl_add_u32 v{O + 4}, v{t}, 2, v{O + 4}")
    p.e(f"v_add_u32 v{O + 4}, 256, v{O + 4}\nv_add_u32 v{O + 5}, 2, v{O + 4}")
    p.label("L_a_isk")
    p.e(f"s_lshl_b32 s6, s{sW}, 8\nv_add_u32 v{O + 6}, s6, v{aQ}")
    for kb in range(8):
        p.e(f"v_smfmac_f32_16x16x64_bf16 {vr(O, 4)}, {vr(V + 4 * kb, 4)}, {vr(S + 8 * kb, 8)}, v{t + 2}")
    p.e(f"v_add_f32 v{O}, v{O}, v{O + 1}\nv_add_f32 v{O + 2}, v{O + 2}, v{O + 3}")
    p.e(f"v_mul_f32 v{O}, s{sSC}, v{O}\nv_mul_f32 v{O + 2}, s{sSC}, v{O + 2}")
    p.e(f"v_cvt_pk_bf16_f32 v{O}, v{O}, v{O + 2}")
    p.e(f"ds_write_b16 v{O + 4}, v{O} offset:{KVST}\nds_write_b16_d16_hi v{O + 5}, v{O} offset:{KVST}")
    p.e("s_mov_b64 exec, 0xffff")
    p.e(f"ds_read_b128 {vr(Q, 4)}, v{O + 6} offset:{KVST}")
    p.e(f"buffer_store_dwordx4 {vr(Q, 4)}, v{aQ}, {WS}, s{sPUB} offen sc1")
    p.e("s_mov_b64 exec, -1")
    p.end_if()
    p.label("L_a_nokv")
    stamp(p, 3)

    p.e(f"v_and_b32 v{t}, 11, v0\nv_cmp_eq_u32 vcc, 0, v{t}\nv_mov_b32 v{t}, 0x3f803f80")
    p.e(f"v_cndmask_b32 v{V + 4}, 0, v{t}, vcc")
    p.e(f"v_mov_b32 v{V + 5}, v{V + 4}")
    for i in range(1, 16):
        p.e(f"v_mov_b64 {vr(V + 8 * (i >> 1) + 4 + 2 * (i & 1), 2)}, {vr(V + 4, 2)}")
    for i in range(1, 4):
        p.e(f"s_add_u32 s{sKV0 + i}, s{sKV0}, {i * 4096}")
    p.e(f"s_mov_b32 s{sRET}, {SPIN}")
    p.e(f"v_bfe_u32 v{t}, v0, 3, 2\nv_lshlrev_b32 v{aK}, 9, v{t}")
    p.e(f"v_and_b32 v{t}, 7, v0\nv_lshl_add_u32 v{aK}, v{t}, 4, v{aK}")
    p.e(f"v_and_b32 v{aV}, 15, v0\nv_lshlrev_b32 v{aV}, 4, v{aV}\nv_bfe_u32 v{t}, v0, 4, 1\nv_lshl_add_u32 v{aV}, v{t}, 10, v{aV}\nv_lshrrev_b32 v{t}, 5, v0")
    p.e(f"v_lshl_add_u32 v{aK}, v{t}, 7, v{aK}\nv_lshl_add_u32 v{aV}, v{t}, 9, v{aV}\nv_add_u32 v{aV}, 256, v{aV}")
    p.e(f"s_cmp_lg_u32 s{sLAY}, 0\ns_cbranch_scc1 L_a_l2sync")
    p.e(f"s_cmp_lt_u32 s{sW}, 2\ns_cbranch_scc1 L_a_l2sync")
    p.e(f"s_cmp_ge_u32 s{sW}, 4\ns_cbranch_scc1 L_a_b1")
    p.waitall()
    flag_store(p, O, aQ, "s79")
    p.e("s_barrier ; PUB")
    p.e("s_branch L_a_ld")
    p.label("L_a_b1")
    if OPT.get("tau", 0) == 1:
        prep_loads(p)
    p.e("s_barrier ; PUB")
    if OPT.get("tau", 0) == 2:
        prep_loads(p)
    prep_compute(p)
    p.e("s_branch L_a_ld")
    p.label("L_a_l2sync")
    p.waitall()
    p.bar("PUB")
    p.label("L_a_ld")
    stamp(p, 4)
    p.e("s_setprio 3")
    for kt in range(8):
        kv_loads(p, kt)
    p.e("s_setprio 0")
    for i in range(8):
        p.e(f"v_mov_b64 {vr(O + 2 * i, 2)}, 0")
    p.waitall(vm=False)
    p.label("L_a_q0")
    p.e(f"ds_read_b128 {vr(Q, 4)}, v{aZ} offset:{QRDY}")
    p.e(f"v_min3_u32 v{Q}, v{Q}, v{Q + 1}, v{Q + 2}\nv_min_u32 v{Q}, v{Q}, v{Q + 3}\nv_cmp_lt_u32 vcc, s{sLAY}, v{Q}")
    p.e("s_cbranch_vccnz L_a_q0ok\ns_sleep 1\ns_branch L_a_q0")
    p.label("L_a_q0ok")
    p.e(f"ds_read_b128 {vr(Q, 4)}, v{aQ} offset:{QF}")

    def check(kt):
        p.e(f"v_max_u32 v{T}, v{K + 4 * kt}, v{V + 8 * kt}")
        p.e(f"v_cmp_eq_u32 vcc, -1, v{T}")
        p.e(f"s_cbranch_vccnz L_a_retry{kt}")
        p.label(f"L_a_back{kt}")
        r = retry
        r.label(f"L_a_retry{kt}")
        r.e(f"s_sub_u32 s{sRET}, s{sRET}, 1\ns_cmp_lt_i32 s{sRET}, 0\ns_cbranch_scc1 L_a_back{kt}")
        r.e(f"s_sleep {OPT.get('d2', 6)}")
        kv_loads(r, kt)
        r.waitall(lg=False)
        r.e(f"v_max_u32 v{T}, v{K + 4 * kt}, v{V + 8 * kt}")
        r.e(f"v_cmp_eq_u32 vcc, -1, v{T}")
        r.e(f"s_cbranch_vccnz L_a_retry{kt}\ns_branch L_a_back{kt}")

    def vswap(kt):
        for i in range(4):
            p.e(f"v_permlane16_swap_b32 v{V + 8 * kt + i}, v{V + 8 * kt + 4 + i}")

    def Sb(i):
        return S + 16 * (i & 1)

    def qk(kt):
        p.e(f"v_mfma_f32_32x32x16_bf16 {vr(Sb(kt), 16)}, {vr(K + 4 * kt, 4)}, {vr(Q, 4)}, 0")

    def pv(kt, s):
        p.e(f"v_smfmac_f32_32x32x32_bf16 {vr(O, 16)}, {vr(V + 8 * kt + 4 * s, 4)}, {vr(Sb(kt) + 8 * s, 8)}, v{IDX}")

    def put_partial():
        p.e(f"ds_write_b128 v{aP}, {vr(O, 4)}\nds_write_b128 v{aP}, {vr(O + 4, 4)} offset:1024\nds_write_b32 v{aL}, v{O + 8}")

    check(0)
    qk(0)
    vswap(0)
    stamp(p, 5)
    for j in range(8):
        for kt in range(8):
            first = j > 0 and kt == 0
            last = j == 7 and kt == 7
            for e in range(16):
                p.e(f"v_exp_f32 v{Sb(kt) + e}, v{Sb(kt) + e}")
                if e == 1 and not (j == 0 and kt == 0): pv((kt - 1) % 8, 1)
                if e == 4 and not last:
                    if j == 0 and kt < 7: check(kt + 1)
                    qk((kt + 1) % 8)
                    if j == 0 and kt < 7: vswap(kt + 1)
                    if kt == 6 and j < 7:
                        p.e(f"ds_read_b128 {vr(Q, 4)}, v{aQ} offset:{QF + (j + 1) * 1024}")
                if e == (12 if first else 9): pv(kt, 0)
                if e == 8 and first:
                    put_partial()
                    p.e(f"v_mfma_f32_32x32x8bf16_1k {vr(O, 16)}, {vr(aZ, 2)}, {vr(aZ, 2)}, 0")
                    p.e("s_setprio 0")
            if j > 0 and kt == 1:
                p.waitall(vm=False)
                p.bar(f"Y{j}")
            if kt == 5:
                p.bar(f"X{j}")
                p.e("s_setprio 1")
    pv(7, 1)
    put_partial()
    p.waitall(vm=False)
    p.e("s_setprio 0")
    p.bar("Y8")
    stamp(p, 6)
    Yr = O
    p.bar("X8")
    for i in range(4):
        p.e(f"v_mov_b64 {vr(Yr + 2 * i, 2)}, 0")
    p.e(f"s_lshl_b32 s6, s{sW}, 1\nv_add_u32 v{t}, s6, v{aQ}")
    for i in range(8):
        p.e(f"ds_read_u16_d16_hi v{Yr + i}, v{t} offset:{YB + i * 1024}")
    p.e(f"s_mul_i32 s6, s{sW}, {RS}\ns_add_u32 s6, s6, {PB}\nv_lshlrev_b32 v{t + 2}, 5, v0\nv_add_u32 v{t + 2}, s6, v{t + 2}")
    p.e(f"s_lshl_b32 s6, s{sLAY}, 1\ns_add_u32 s6, s6, s{sW}\ns_cmp_ge_u32 s6, 2\ns_cbranch_scc1 L_a_nowkv")
    p.begin_if("wkv1")
    wkv_reads(p)
    p.end_if()
    p.label("L_a_nowkv")
    p.bar("OUT")
    p.e(f"ds_read_b128 {vr(O + 8, 4)}, v{t + 2}\nds_read_b128 {vr(O + 12, 4)}, v{t + 2} offset:16")
    stamp(p, 7)
    for i in range(8):
        p.e(f"v_add_f32 v{X + i}, v{X + i}, v{O + 8 + i}")
    layernorm(p, X, T)
    for i in range(8):
        p.e(f"v_fma_f32 v{O + 8 + i}, v{X + i}, s68, v{T}")
    for i in range(8):
        p.e(f"v_fmac_f32 v{X + i}, v{O + 8 + i}, v{Yr + i}")
    p.e(f"s_cmp_lg_u32 s{sLAY}, 0\ns_cbranch_scc1 L_a_final")
    p.e(f"s_mov_b32 s{sLAY}, 1\ns_add_u32 s{sPUB}, s{sPUB}, {KV2 - KV1}\ns_add_u32 s{sKV0}, s{sKV0}, {KV2 - KV1}")
    if OPT["stamps"]:
        p.e("s_nop 1\nv_mov_b32_dpp v22, v23 row_shr:8 row_mask:0xf bank_mask:0xf\ns_mov_b64 exec, 0xff00\nv_mov_b32 v23, v22\ns_mov_b64 exec, -1")
    p.e("s_branch L_a_layer")
    p.label("L_a_final")
    for i in range(4):
        p.e(f"v_cvt_pk_bf16_f32 v{Q + i}, v{X + 2 * i}, v{X + 2 * i + 1}")
    srd(p, 40, pOUT, 0x200000)
    p.e(f"buffer_store_dwordx4 {vr(Q, 4)}, v{aQ}, {SA}, s70 offen")
    p.e(f"s_or_b32 s6, s{sO}, s{sW}\ns_cmp_lg_u32 s6, 0\ns_cbranch_scc1 L_a_end")
    p.e(f"v_mov_b32 v{t}, s{sEP}\ns_mov_b64 exec, 1")
    p.e(f"buffer_store_dword v{t}, v{aZ}, {WS}, 0 offen")
    p.e("s_mov_b64 exec, -1")
    p.label("L_a_end")
    stamp(p, 0)
    stamp_flush(p)
    if "echo" in OPT:
        p.e("s_add_u32 s94, s94, 7000")
        p.label("L_echo")
        p.e("s_sleep 1\ns_memrealtime s[92:93]")
        p.waitall(vm=False)
        p.e("s_sub_u32 s6, s94, s92\ns_cmp_gt_i32 s6, 0\ns_cbranch_scc1 L_echo")
    p.e("s_endpgm")
    p.ins += retry.ins
    return p


hW, hIDX, hXN, hQW, hPR, hLR, hOW, hMX, hH, hU, hZ = 1, 2, 3, 4, 5, 6, 7, 9, 10, 11, 15
hT0 = 12
OACC, QACC, AF, HT, SACC, RING = 16, 48, 52, 60, 84, 116
sH, sHB, sD, sSO = 56, 57, 58, 59


class Stream:
    def __init__(self, p, frags, slots):
        self.p, self.frags, self.free = p, frags, list(slots)
        self.next_issue = 0
        self.inflight = []
        self.cur_so = None
        self.retired = set()
        self.limit = len(frags)

    def pump(self, maxn=99):
        n = 0
        while self.free and self.next_issue < self.limit and n < maxn:
            off = self.frags[self.next_issue]
            slot = self.free.pop(0)
            base = off & ~4095
            if base != self.cur_so:
                self.p.e(f"s_add_u32 s{sSO}, s{sHB}, {base}")
                self.cur_so = base
            for J in range(2):
                self.p.e(f"buffer_load_dwordx4 {vr(slot + 4 * J, 4)}, v{hW}, {WS}, s{sSO} offen offset:{(off & 4095) + J * 1024} sc1")
            self.inflight.append(slot)
            self.next_issue += 1
            n += 1

    def take(self):
        return self.inflight.pop(0)

    def release(self, slot, pump=True):
        if slot not in self.retired:
            self.free.append(slot)
        if pump:
            self.pump()


def merge(a, b):
    a, b = list(a), list(b)
    i = j = 0
    while i < len(a) or j < len(b):
        if j >= len(b) or (i < len(a) and i * len(b) <= j * len(a)):
            a[i](); i += 1
        else:
            b[j](); j += 1


def helper_wave():
    p = Prog("help")
    p.stampreg = "v8"
    slow = Prog("hslow")
    t = hT0
    p.label("L_helper")
    p.e("s_setprio 2")
    p.e(f"s_sub_u32 s{sH}, s{sW}, 8\ns_lshl_b32 s{sHB}, s{sH}, 14")
    p.e(f"v_lshlrev_b32 v{hW}, 4, v0\nv_mov_b32 v{hZ}, 0")
    p.e(f"s_lshl_b32 s6, s{sO}, 2\ns_load_dword s{sD}, s[{pSD}:{pSD + 1}], s6")
    p.e(f"v_and_b32 v60, 31, v0\nv_lshlrev_b32 v60, 4, v60\nv_lshrrev_b32 v61, 5, v0\nv_lshl_add_u32 v60, v61, 17, v60")
    p.e(f"v_mov_b64 v[64:65], -1\nv_mov_b64 v[66:67], -1\ns_lshl_b32 s6, s{sO}, 9\ns_add_u32 s6, s6, {KV1}")
    p.e(f"s_cmp_lg_u32 s{sH}, 0\ns_cbranch_scc1 L_h_noclr")
    ctok = p.e(f"buffer_store_dwordx4 v[64:67], v60, {WS}, s6 offen sc1")
    p.label("L_h_noclr")
    srd(p, 40, pWQ, 0x80000)
    p.e("v_lshlrev_b32 v62, 1, v61\nv_and_b32 v63, 7, v0\nv_xor_b32 v62, v62, v63\nv_lshlrev_b32 v62, 4, v62")
    p.e("v_lshrrev_b32 v63, 3, v0\nv_lshl_add_u32 v62, v63, 10, v62\nv_xor_b32 v63, 64, v62")
    p.e(f"s_lshl_b32 s6, s{sH}, 17\ns_add_u32 s7, s{sHB}, {WQN}")
    for i in range(16):
        p.e(f"s_add_u32 m0, s7, {i * 1024}\ns_add_u32 s60, s6, {i * 8192}")
        p.e(f"buffer_load_dwordx4 v{62 + (i & 1)}, {SA}, s60 offen lds")
    p.e(f"s_lshr_b32 s70, s{sH}, 1\ns_and_b32 s71, s{sH}, 1\ns_lshl_b32 s6, s{sO}, 1\ns_add_u32 s72, s6, s70")
    p.e(f"s_lshl_b32 s6, s72, 12\ns_add_u32 s52, s{pSK}, s6\ns_addc_u32 s53, s{pSK + 1}, 0\ns_mov_b32 s54, 0x1000\ns_mov_b32 s55, 0x20000")
    p.e(f"s_mul_i32 s73, s{sH}, {2 * CS}\ns_add_u32 s73, s73, {HB}")
    p.e(f"s_mul_i32 s74, s{sH}, 3072\ns_add_u32 s74, s74, {UB}")
    p.e(f"s_lshl_b32 s75, s{sH}, 12\ns_add_u32 s75, s75, {SX}")
    p.e(f"v_and_b32 v30, 31, v0\nv_and_b32 v{t + 1}, 7, v0")
    p.e(f"v_and_b32 v{hIDX}, 1, v0\nv_mul_u32_u24 v{hIDX}, 0xaaaa, v{hIDX}\nv_add_u32 v{hIDX}, 0x4444, v{hIDX}")
    p.e(f"v_lshrrev_b32 v{t}, 4, v0\nv_lshlrev_b32 v{hXN}, 5, v{t}\nv_xor_b32 v{hXN}, v{hXN}, v{hW}")
    p.e(f"v_bfe_u32 v{hQW}, v0, 3, 1\nv_lshlrev_b32 v{hQW}, 9, v{hQW}\nv_lshl_add_u32 v{hQW}, v{t}, 5, v{hQW}")
    p.e(f"v_lshl_add_u32 v{hQW}, v{t + 1}, 1, v{hQW}\ns_lshl_b32 s6, s{sH}, 7\nv_add_u32 v{hQW}, s6, v{hQW}")
    p.e(f"s_lshl_b32 s6, s70, 10\ns_lshl_b32 s7, s71, 3\ns_add_u32 s6, s6, s7\ns_add_u32 s6, s6, {PB}\nv_add_u32 v{hPR}, s6, v{hW}")
    p.e(f"v_lshlrev_b32 v{hLR}, 4, v30")
    p.e(f"v_lshrrev_b32 v{t + 2}, 5, v0\nv_lshlrev_b32 v{hOW}, 5, v30\nv_lshl_add_u32 v{hOW}, v{t + 2}, 4, v{hOW}")
    p.e(f"s_lshl_b32 s6, s{sH}, 2\nv_add_u32 v{hOW}, s6, v{hOW}\nv_mov_b32 v{hMX}, 0")
    p.e(f"v_add_u32 v60, 1, v30\nv_and_b32 v61, 3, v60\nv_sub_u32 v60, v60, v61\nv_mul_u32_u24 v61, {CS}, v61")
    p.e(f"v_lshl_add_u32 v61, v60, 1, v61\nv_lshl_add_u32 v61, v{t + 2}, 4, v61")
    p.e(f"s_mul_i32 s6, s70, {4 * CS}\ns_lshl_b32 s7, s71, 10\ns_add_u32 s6, s6, s7\ns_add_u32 s6, s6, {HB}\nv_add_u32 v{hH}, s6, v61")
    p.e(f"v_sub_u32 v60, 31, v30\nv_lshlrev_b32 v60, 4, v60\nv_mul_u32_u24 v61, 1536, v{t + 2}\nv_add_u32 v60, v60, v61")
    p.e(f"s_mul_i32 s76, s70, 6144\ns_add_u32 s76, s76, {UB}\ns_lshl_b32 s7, s71, 8\ns_add_u32 s6, s76, s7\nv_add_u32 v{hU}, s6, v60")
    p.e(f"v_add_u32 v80, v{t + 2}, v30\ns_lshl_b32 s6, s71, 1\ns_sub_u32 s6, s6, 32\nv_add_u32 v80, s6, v80\nv_lshlrev_b32 v80, 1, v80")
    p.e(f"v_mul_u32_u24 v81, {CS}, v{t + 2}\nv_lshl_add_u32 v81, v30, 1, v81\nv_add_u32 v81, s73, v81")
    p.e(f"v_lshlrev_b32 v166, 5, v0\nv_lshlrev_b32 v167, 5, v30\ns_lshl_b32 s77, s{sH}, 11\ns_add_u32 s83, s77, {FLAGO}\ns_add_u32 s77, s77, {FLAGQ}")
    p.e(f"s_lshr_b32 s6, s{sO}, 3\ns_lshl_b32 s6, s6, 10\ns_add_u32 s79, s6, {FLAGU}")
    p.waitall(vm=False)
    p.e(f"s_add_u32 s{sEP}, s{sEP}, 0x9e3779b1")
    p.e(f"s_lshl_b32 s6, s{sD}, 16\ns_and_b32 s7, s{sD}, 0xffff0000\ns_cmp_eq_u32 s70, 0\ns_cselect_b32 s{sD}, s6, s7")
    if OPT["stamps"]:
        p.e("v_mov_b32 v8, 0\nv_writelane_b32 v8, s90, 0")
    p.e(f"s_cmp_lg_u32 s{sH}, 0\ns_cbranch_scc1 L_h_noann")
    p.wait(ctok)
    p.e(f"s_lshl_b32 s6, s{sO}, 7\ns_add_u32 s6, s6, {FLAGC}")
    flag_store(p, 64, hW, "s6", 255)
    p.label("L_h_noann")
    for i in range(16):
        p.e(f"v_mov_b64 {vr(OACC + 2 * i, 2)}, 0")
    p.e(f"v_add_u32 v82, v61, v{hLR}\nv_add_u32 v82, s74, v82")
    p.e(f"v_lshlrev_b32 v60, 4, v{t + 2}\nv_bfe_u32 v61, v0, 4, 1\nv_bfe_u32 v62, v0, 3, 1\nv_lshl_add_u32 v61, v62, 1, v61")
    p.e("v_lshl_add_u32 v60, v61, 2, v60\nv_bfe_u32 v62, v0, 2, 1\nv_add_u32 v60, v60, v62\nv_lshlrev_b32 v60, 7, v60")
    p.e(f"v_xor_b32 v61, s{sH}, v61\nv_lshl_add_u32 v60, v61, 5, v60\nv_and_b32 v62, 3, v0\nv_lshl_add_u32 v60, v62, 3, v60\nv_add_u32 v60, {WQN}, v60")
    p.e(f"v_lshlrev_b32 v63, 7, v0\ns_lshl_b32 s60, s{sH}, 13\ns_add_u32 s60, s60, {FLAGC}")
    stamp(p, 1)
    p.bar("XN")
    poll(p, "h_fc", f"buffer_load_dword v164, v63, {WS}, s60 offen sc1", [164], 78)
    stamp(p, 2)
    p.bar("PUB")
    stamp(p, 3)

    frags = []
    for L in range(2):
        order = ["Q0", "Q1", "Q2", "O0", "Q3", "O1", "Q4", "O2", "Q5", "O3", "Q6", "O4", "Q7", "O5", "O6", "O7"]
        for nm in order:
            base = (WQS if nm[0] == "Q" else WOS) + int(nm[1]) * 65536
            frags += [base + i * 2048 for i in range(8)]
    sacc_slots = [SACC + 8 * i for i in range(4)]
    st = Stream(p, frags, sacc_slots + [RING + 8 * i for i in range(6)])
    st.retired = set(sacc_slots)
    st.limit = 8
    for kb in range(8):
        slot = st.free.pop(0)
        for a in range(4):
            p.e(f"ds_read_b64_tr_b16 {vr(slot + 2 * a, 2)}, v60 offset:{(64 * kb + 32 * (a >> 1) + 2 * (a & 1)) * 128}")
        st.inflight.append(slot)
    st.next_issue = 8

    def qproj(tile):
        def head():
            p.e(f"ds_read_b128 {vr(QACC, 4)}, v{hZ}")
            p.e(f"ds_read_b128 {vr(AF, 4)}, v{hXN} offset:{XN}")
        yield head
        for kb in range(8):
            def step(kb=kb):
                if kb < 7:
                    p.e(f"ds_read_b128 {vr(AF + 4 * ((kb + 1) & 1), 4)}, v{hXN} offset:{XN + (kb + 1) * 1024}")
                s = st.take()
                p.e(f"v_smfmac_f32_16x16x64_bf16 {vr(QACC, 4)}, {vr(AF + 4 * (kb & 1), 4)}, {vr(s, 8)}, v{hIDX}")
                st.release(s)
            yield step

        def fin():
            p.e(f"v_add_f32 v{t}, v{QACC}, v{QACC + 1}\nv_add_f32 v{t + 1}, v{QACC + 2}, v{QACC + 3}")
            p.e(f"v_cvt_pk_bf16_f32 v{t}, v{t}, v{t + 1}")
            p.e(f"ds_write_b16 v{hQW}, v{t} offset:{QF + tile * 1024}\nds_write_b16_d16_hi v{hQW}, v{t} offset:{QF + tile * 1024 + 16}")
        yield fin

    def reduce():
        a, L = HT, HT + 16
        p.e(f"ds_read_b128 {vr(L, 4)}, v{hLR} offset:{LP}\nds_read_b128 {vr(L + 4, 4)}, v{hLR} offset:{LP + 512}")
        for w in range(8):
            p.e(f"ds_read_b64 {vr(a + 2 * w, 2)}, v{hPR} offset:{w * 2048}")
        for i in range(1, 8):
            p.e(f"v_add_f32 v{L}, v{L}, v{L + i}")
        p.e(f"v_rcp_f32 v{L + 1}, v{L}")
        p.waitall(vm=False)
        for w in range(1, 8):
            p.e(f"v_add_f32 v{a}, v{a}, v{a + 2 * w}\nv_add_f32 v{a + 1}, v{a + 1}, v{a + 2 * w + 1}")
        p.e(f"v_mul_f32 v{a}, v{a}, v{L + 1}\nv_mul_f32 v{a + 1}, v{a + 1}, v{L + 1}")
        p.e(f"v_cvt_pk_bf16_f32 v{a}, v{a}, v{a + 1}")
        p.e(f"ds_write_b32 v{hOW}, v{a} offset:{OA}")
        p.e(f"v_max3_f32 v{hMX}, v{hMX}, v{L}, v{L + 1}")

    def oproj(pump=True):
        yield lambda: p.e(f"ds_read_b128 {vr(AF, 4)}, v{hW} offset:{OA}")
        for ct in range(8):
            def step(ct=ct):
                s = st.take()
                p.e(f"v_smfmac_f32_16x16x64_bf16 {vr(OACC + 4 * ct, 4)}, {vr(AF, 4)}, {vr(s, 8)}, v{hIDX}")
                st.release(s, pump)
            yield step

    def ssm(i0, n):
        Al, Ah, B0, B1 = HT, HT + 4, HT + 8, HT + 12
        D0, D1 = SACC, SACC + 16

        def boff(i):
            b8 = 2 * i - 4
            return (b8 & 3) * 1536 + ((b8 >> 2) + 1) * 16

        rAl = lambda i: p.e(f"ds_read_b64 {vr(Al, 2)}, v{hH} offset:{32 * i}\nds_read_b64 {vr(Al + 2, 2)}, v{hH} offset:{32 * i + 8}")
        rAh = lambda i: p.e(f"ds_read_b64 {vr(Ah, 2)}, v{hH} offset:{32 * i + 2048}\nds_read_b64 {vr(Ah + 2, 2)}, v{hH} offset:{32 * i + 2056}")
        rB0 = lambda i: p.e(f"ds_read_b128 {vr(B0, 4)}, v{hU} offset:{boff(i) + 512}")
        rB1 = lambda i: p.e(f"ds_read_b128 {vr(B1, 4)}, v{hU} offset:{boff(i)}")
        if n:
            yield lambda: (rB1(i0), rAl(i0), rB0(i0), rAh(i0))
        for i in range(i0, i0 + n):
            more = i + 1 < i0 + n

            def m1(i=i, more=more):
                p.e(f"v_mfma_f32_32x32x16_bf16 {vr(D1, 16)}, {vr(Al, 4)}, {vr(B1, 4)}, {vr(D1, 16) if i else 0}")
                if more: rB1(i + 1)

            def m2(i=i, more=more):
                p.e(f"v_mfma_f32_32x32x16_bf16 {vr(D0, 16)}, {vr(Al, 4)}, {vr(B0, 4)}, {vr(D0, 16) if i else 0}")
                if more: rAl(i + 1)

            def m3(i=i, more=more):
                p.e(f"v_mfma_f32_32x32x16_bf16 {vr(D1, 16)}, {vr(Ah, 4)}, {vr(B0, 4)}, {vr(D1, 16)}")
                if more: rB0(i + 1); rAh(i + 1)
            yield m1
            yield m2
            yield m3

    def ssm_send():
        p.e(f"v_add_u32 v{t}, s75, v{hW}")
        p.e("s_nop 7\ns_nop 3")
        p.waitall(vm=False)
        p.e("s_cmp_eq_u32 s71, 0\ns_cbranch_scc1 L_h_s0")
        for i in range(4):
            p.e(f"ds_write_b128 v{t}, {vr(SACC + 4 * i, 4)} offset:{i * 1024}")
        p.e("s_branch L_h_s1")
        p.label("L_h_s0")
        for i in range(4):
            p.e(f"ds_write_b128 v{t}, {vr(SACC + 16 + 4 * i, 4)} offset:{i * 1024}")
        p.label("L_h_s1")
        p.waitall(vm=False)

    ytok = [None]

    def ssm_finish():
        R = HT

        def a0():
            p.e(f"s_xor_b32 s82, s{sH}, 1\ns_lshl_b32 s82, s82, 12\ns_add_u32 s82, s82, {SX}\nv_add_u32 v164, s82, v{hW}")
            for i in range(4):
                p.e(f"ds_read_b128 {vr(R + 4 * i, 4)}, v164 offset:{i * 1024}")
            p.e(f"v_lshrrev_b32 v{t + 2}, 5, v0\nv_lshl_add_u32 v164, v{t + 2}, 3, v{hLR}")
            p.e(f"s_lshl_b32 s7, s71, 9\ns_sub_u32 s7, s76, s7\ns_add_u32 s7, s7, {63 * 16 + 8}\nv_sub_u32 v164, s7, v164")
            for b in range(4):
                p.e(f"ds_read_b64 {vr(R + 16 + 2 * b, 2)}, v164 offset:{(3 - b) * 1536}")
        yield a0

        def a1():
            p.waitall(vm=False)
            p.e("s_cmp_eq_u32 s71, 0\ns_cbranch_scc1 L_h_f0")
            for i in range(16):
                p.e(f"v_add_f32 v{R + i}, v{R + i}, v{SACC + 16 + i}")
            p.e("s_branch L_h_f1")
            p.label("L_h_f0")
            for i in range(16):
                p.e(f"v_add_f32 v{R + i}, v{R + i}, v{SACC + i}")
            p.label("L_h_f1")
            p.e(f"v_mul_u32_u24 v164, 5, v{hLR}\nv_lshl_add_u32 v164, v{t + 2}, 3, v164\nv_add_u32 v164, s82, v164")
        yield a1
        for b in range(4):
            def ab(b=b):
                u0, u1 = R + 16 + 2 * b, R + 17 + 2 * b
                p.e(f"v_and_b32 v165, 0xffff0000, v{u1}\nv_fmac_f32 v{R + 4 * b}, s{sD}, v165")
                p.e(f"v_lshlrev_b32 v165, 16, v{u1}\nv_fmac_f32 v{R + 4 * b + 1}, s{sD}, v165")
                p.e(f"v_and_b32 v165, 0xffff0000, v{u0}\nv_fmac_f32 v{R + 4 * b + 2}, s{sD}, v165")
                p.e(f"v_lshlrev_b32 v165, 16, v{u0}\nv_fmac_f32 v{R + 4 * b + 3}, s{sD}, v165")
                p.e(f"v_cvt_pk_bf16_f32 v{R + 4 * b}, v{R + 4 * b}, v{R + 4 * b + 1}\nv_cvt_pk_bf16_f32 v{R + 4 * b + 1}, v{R + 4 * b + 2}, v{R + 4 * b + 3}")
                p.e(f"ds_write_b64 v164, {vr(R + 4 * b, 2)} offset:{b * 16}")
            yield ab

        def a2():
            p.e(f"v_lshrrev_b32 v164, 2, v0\nv_lshl_add_u32 v164, v164, 4, v{hW}\nv_add_u32 v164, s82, v164")
            p.e(f"ds_read_b128 {vr(R, 4)}, v164\nds_read_b128 {vr(R + 4, 4)}, v164 offset:1280")
        yield a2

        def a3():
            p.e(f"s_lshl_b32 s6, s72, 12\ns_lshl_b32 s7, s71, 11\ns_add_u32 s6, s6, s7\ns_add_u32 s6, s6, {YT}")
            p.e(f"buffer_store_dwordx4 {vr(R, 4)}, v{hW}, {WS}, s6 offen sc1")
            ytok[0] = p.e(f"buffer_store_dwordx4 {vr(R + 4, 4)}, v{hW}, {WS}, s6 offen offset:1024 sc1")
        yield a3

    def checked(name, load, regs):
        for i, r in enumerate(regs):
            if i == 0:
                p.e(f"v_cmp_ne_u32 vcc, s{sEP}, v{r}")
            else:
                p.e(f"v_cmp_ne_u32 s[6:7], s{sEP}, v{r}\ns_or_b64 vcc, vcc, s[6:7]")
        p.e(f"s_cbranch_vccnz L_{name}_slow")
        p.label(f"L_{name}_back")
        slow.label(f"L_{name}_slow")
        poll(slow, name, load, regs, 78)
        slow.e(f"s_branch L_{name}_back")

    det = [16]
    cur = [0]

    def sync(name):
        p.waitall(vm=False)
        d = OPT["stamps"] and OPT.get("detail", 0) == cur[0]
        if d:
            stamp(p, det[0]); det[0] += 1
        p.bar(name)
        if d:
            stamp(p, det[0]); det[0] += 1

    SS = [0, 5, 11, 16, 22, 27, 32]

    def ssm_at(L, k):
        return ssm(SS[k], SS[k + 1] - SS[k]) if L == 0 and 0 <= k < 6 else []

    for L in range(2):
        cur[0] = L
        merge(qproj(0), [])
        p.e(f"v_mov_b32 v{t}, {L + 1}\nv_mov_b32 v{t + 1}, s{sH}\nv_lshlrev_b32 v{t + 1}, 2, v{t + 1}")
        p.e(f"ds_write_b32 v{t + 1}, v{t} offset:{QRDY}")
        stamp(p, 4 + 8 * L)
        if L == 1:
            p.bar("PUB")
        else:
            poll(p, "h_fw", f"buffer_load_dword v164, v166, {WS}, s77 offen sc1", [164], 78)
            st.limit = 24
            st.free = sacc_slots[:2] + st.free
            st.pump()
        if OPT["stamps"] and OPT.get("detail", 0) == L:
            stamp(p, det[0]); stamp(p, det[0] + 1); det[0] += 2
        merge(qproj(1), [])
        if L == 0:
            oload = f"buffer_load_dword v165, v166, {WS}, s83 offen sc1"
            p.e(oload)
        sync("X0")
        if L == 0:
            p.e(f"ds_write_b128 v82, {vr(OACC, 4)} offset:1024")
            p.e(f"v_lshrrev_b32 v60, 4, v0\nv_and_b32 v61, 7, v0\nv_xor_b32 v60, v60, v61\nv_lshlrev_b32 v60, 4, v60\nv_lshrrev_b32 v62, 3, v0")
            p.e("v_lshl_add_u32 v60, v62, 7, v60\nv_add_u32 v60, s75, v60\nv_xor_b32 v63, 64, v60")
            p.e(f"ds_read_b128 {vr(SACC, 4)}, v60\nds_read_b128 {vr(SACC + 4, 4)}, v63 offset:1024")
            p.e("v_lshlrev_b32 v62, 12, v62\nv_lshl_add_u32 v62, v61, 4, v62")
            p.e(f"s_lshr_b32 s6, s{sO}, 5\ns_lshl_b32 s6, s6, 18\ns_lshl_b32 s7, s{sH}, 16\ns_add_u32 s6, s6, s7\ns_and_b32 s7, s{sO}, 31\ns_lshl_b32 s7, s7, 7")
            p.e(f"s_sub_u32 s6, s6, s7\ns_add_u32 s6, s6, {UR + 3968}\ns_add_u32 s7, s6, 0x8000")
            p.e(f"buffer_store_dwordx4 {vr(SACC, 4)}, v62, {WS}, s6 offen sc1")
            stok = p.e(f"buffer_store_dwordx4 {vr(SACC + 4, 4)}, v62, {WS}, s7 offen sc1")
            uload = f"buffer_load_dword v164, v167, {WS}, s79 offen sc1"
            checked("h_fo", oload, [165])
            st.limit = len(frags)
            p.wait(stok)
            p.e(f"s_lshr_b32 s6, s{sO}, 5\ns_lshl_b32 s6, s6, 2\ns_add_u32 s6, s6, s{sH}\ns_lshl_b32 s6, s6, 5\ns_and_b32 s7, s{sO}, 31\ns_add_u32 s6, s6, s7")
            p.e(f"s_lshl_b32 s6, s6, 5\ns_add_u32 s6, s6, {FLAGU}")
            flag_store(p, SACC + 12, hW, "s6")
        if L == 0:
            for ce in range(2):
                p.e(f"s_add_u32 m0, s73, {ce * CS + 64}\ns_lshl_b32 s6, s71, 2\ns_add_u32 s6, s6, {2 * ce}")
                for i in range(4):
                    p.e(f"buffer_load_dwordx4 v{hW}, s[52:55], s6 offen offset:{i * 1024} lds")
            p.e(f"buffer_load_ushort v{SACC + 8}, v80, s[52:55], 0 offen")
            p.e(f"v_mov_b32 v{SACC + 9}, v81")
        sync("Y1")
        for j in range(1, 8):
            reduce()
            merge(qproj(j + 1) if j < 7 else [], ssm_finish() if L == 0 and j == 5 else ssm_at(L, 2 * j - 4))
            if L == 0 and j == 1:
                p.e(f"ds_write_b16 v{SACC + 9}, v{SACC + 8}")
                p.e(uload)
            if L == 0 and j == 5:
                st.retired = set()
                st.free += sacc_slots
                st.pump()
            if L == 0 and j == 7:
                checked("h_fy", yload, [164, 165])
                p.e(f"v_lshlrev_b32 v166, 15, v0\ns_lshl_b32 s6, s{sH}, 13\ns_lshl_b32 s7, s{sO}, 4\ns_add_u32 s6, s6, s7\ns_add_u32 s6, s6, {YT}\ns_add_u32 s7, s6, 4096")
                p.e(f"s_lshl_b32 s80, s{sH}, 11\ns_add_u32 m0, s80, {YB}")
                p.e(f"buffer_load_dwordx4 v166, {WS}, s6 offen sc1 lds")
                p.e(f"s_add_u32 m0, s80, {YB + 1024}")
                gtok = p.e(f"buffer_load_dwordx4 v166, {WS}, s7 offen sc1 lds")
            sync(f"X{j}")
            if L == 0 and j == 1:
                checked("h_fu", uload, [164])
                p.e(f"v_lshlrev_b32 v165, 6, v0\ns_lshl_b32 s6, s72, 12\ns_lshl_b32 s7, s71, 5\ns_add_u32 s6, s6, s7\ns_add_u32 s6, s6, {UR}\ns_add_u32 s7, s6, 16")
                p.e("s_mov_b32 m0, s74")
                p.e(f"buffer_load_dwordx4 v165, {WS}, s6 offen sc1 lds")
                p.e("s_add_u32 m0, s74, 1536")
                utok = p.e(f"buffer_load_dwordx4 v165, {WS}, s7 offen sc1 lds")
            merge(oproj(), ssm_at(L, 2 * j - 3))
            if L == 0 and j == 1:
                p.wait(utok)
            if L == 0 and j == 4:
                ssm_send()
            if L == 0 and j == 5:
                p.wait(ytok[0])
                p.e("s_and_b32 s6, s72, 7\ns_lshl_b32 s6, s6, 11\ns_lshr_b32 s7, s72, 3\ns_lshl_b32 s7, s7, 5\ns_add_u32 s6, s6, s7")
                p.e(f"s_lshl_b32 s7, s71, 14\ns_add_u32 s6, s6, s7\ns_add_u32 s6, s6, {FLAG2}")
                flag_store(p, HT, hW, "s6")
            if L == 0 and j == 6:
                p.e(f"s_lshr_b32 s6, s{sO}, 7\ns_lshl_b32 s6, s6, 14\ns_lshl_b32 s7, s{sH}, 12\ns_add_u32 s6, s6, s7\ns_add_u32 s79, s6, {FLAG2}")
                yload = f"buffer_load_dword v164, v166, {WS}, s79 offen sc1\nbuffer_load_dword v165, v166, {WS}, s79 offen offset:2048 sc1"
                p.e(yload)
            if j == 7:
                p.e(f"v_lshrrev_b32 v{t}, 4, v0\nv_mul_u32_u24 v{t}, {2 * RS}, v{t}\nv_and_b32 v{t + 1}, 15, v0\nv_lshl_add_u32 v{t}, v{t + 1}, 5, v{t}")
                p.e(f"s_lshl_b32 s6, s{sH}, 9\ns_add_u32 s6, s6, {PB}\nv_add_u32 v{t}, s6, v{t}")
            sync(f"Y{j + 1}")
        reduce()
        if L == 0:
            p.wait(gtok)
        sync("X8")
        merge(oproj(pump=False), [])
        for ct in range(8):
            p.e(f"v_add_f32 v{HT + ct}, v{OACC + 4 * ct}, v{OACC + 4 * ct + 1}\nv_add_f32 v{HT + 8 + ct}, v{OACC + 4 * ct + 2}, v{OACC + 4 * ct + 3}")
            if ct == 3:
                p.e(f"ds_write_b128 v{t}, {vr(HT, 4)}\nds_write_b128 v{t}, {vr(HT + 8, 4)} offset:{RS}")
        p.e(f"ds_write_b128 v{t}, {vr(HT + 4, 4)} offset:16\nds_write_b128 v{t}, {vr(HT + 12, 4)} offset:{RS + 16}")
        sync("OUT")
        if L == 0:
            st.pump()
            for i in range(16):
                p.e(f"v_mov_b64 {vr(OACC + 2 * i, 2)}, 0")
            p.bar("XN")
    stamp_flush(p)
    p.e("s_endpgm")
    p.ins += slow.ins
    return p


def main():
    ref = open(f"cdna_kernels/{NAME}.s.ref").read()
    head = [l for l in ref.split("\n") if l.startswith(";") and "@launch" not in l]
    pro, att, hel = prologue(), attention_wave(), helper_wave()
    assert att.bars + att.bars == hel.bars, (att.bars, hel.bars)
    out = "\n".join(head) + f"\n; @launch grid=(256,1,1) block=(768,1,1) lds={LDS_SIZE}\n"
    out += f""".amdgcn_target "amdgcn-amd-amdhsa--gfx950"
.text
.globl {NAME}_kernel
.p2align 8
.type {NAME}_kernel,@function
{NAME}_kernel:
"""
    out += pro.text() + att.text() + hel.text() + "L_exit:\n    s_endpgm\n"
    out += f""".section .rodata,"a"
.p2align 6
.amdhsa_kernel {NAME}_kernel
  .amdhsa_next_free_vgpr 168
  .amdhsa_next_free_sgpr 96
  .amdhsa_accum_offset 168
  .amdhsa_group_segment_fixed_size 0
  .amdhsa_kernarg_size 112
  .amdhsa_user_sgpr_count 2
  .amdhsa_user_sgpr_kernarg_segment_ptr 1
  .amdhsa_system_sgpr_workgroup_id_x 1
.end_amdhsa_kernel
"""
    open(sys.argv[1], "w").write(out)
    print("nops added:", pro.nops_added, att.nops_added, hel.nops_added, "instr:", len(att.ins), len(hel.ins))


main()
```

```python
import sys, os
sys.path.insert(0, os.path.dirname(os.path.abspath(__file__)))
from asmlib import Prog

NAME = "interleave_layers__grouped_kv_mqa__ssm_conv_h3__prompt"
OPT = dict(stamps=0)
for a in sys.argv[2:]:
    k, v = a.split("=")
    OPT[k] = int(v)

EPOCH = 0
FLAGC = 0x8000
FLAGQ = 0x4000
FLAGO = 0x6000
FLAGU = 0x50000
FLAG2 = 0x58000
KV1 = 0x10000
KV2 = 0x30000
WQS = 0x100000
WOS = 0x180000
UR = 0x200000
YT = 0x400000
STAMP = 0x600000
WS_SIZE = 0x700000
ZP = 0
QRDY = 0x40
KVST = 0x100
QF = 0x400
OA = 0x2400
LP = 0x2800
XN = 0x2C00
YB = 0x4C00
PB = 0x6C00
RS = 2080
WKV = 0xAE00
SX = 0x13000
UB = 0x17000
HB = 0x1A000
CS = 4160
WQN = UB
LDS_SIZE = 0x27000
SPIN = 20000
SCALE = 0x3EB8AA3B

sW, sO, sEP = 3, 4, 5
pX, pWQ, pWK, pWV, pWO, pBK, pBV, pSH, pSK, pSD, pOUT, pDBG, pWS = 8, 10, 12, 14, 16, 20, 22, 24, 26, 28, 30, 32, 34
WS = "s[36:39]"
SA, SB, SC = "s[40:43]", "s[44:47]", "s[48:51]"


def vr(a, n=1):
    return f"v{a}" if n == 1 else f"v[{a}:{a + n - 1}]"


def srd(p, base, ptr, size):
    p.e(f"s_mov_b32 s{base}, s{ptr}\ns_mov_b32 s{base + 1}, s{ptr + 1}\ns_mov_b32 s{base + 2}, {size}\ns_mov_b32 s{base + 3}, 0x20000")


_st = [0]


def stamp(p, idx):
    if "echo" in OPT and p.name == "attn" and OPT["echo"] % 8 == idx and OPT["echo"] >= 0:
        p.waitall(vm=False)
        p.e("s_memrealtime s[92:93]")
        p.waitall(vm=False)
        p.e(f"s_cmp_eq_u32 s56, {OPT['echo'] // 8}\ns_cselect_b32 s94, s92, s94")
    if not OPT["stamps"]:
        return
    p.waitall(vm=False)
    p.e("s_memrealtime s[92:93]")
    p.waitall(vm=False)
    p.e(f"v_writelane_b32 {p.stampreg}, s92, {idx}")


def stamp_flush(p):
    if not OPT["stamps"]:
        return
    p.e(f"s_mul_i32 s92, s{sO}, 12\ns_add_u32 s92, s92, s{sW}\ns_lshl_b32 s92, s92, 8\ns_add_u32 s92, s92, {STAMP}")
    p.e("v_lshlrev_b32 v1, 2, v0")
    p.e(f"buffer_store_dword {p.stampreg}, v1, {WS}, s92 offen")


def poll(p, name, load, regs, tmp_s):
    p.e(f"s_mov_b32 s{tmp_s}, {SPIN}")
    p.label(f"L_{name}")
    p.e(load)
    p.waitall(lg=False)
    for i, r in enumerate(regs):
        if i == 0:
            p.e(f"v_cmp_ne_u32 vcc, s{sEP}, v{r}")
        else:
            p.e(f"v_cmp_ne_u32 s[6:7], s{sEP}, v{r}\ns_or_b64 vcc, vcc, s[6:7]")
    p.e(f"s_cbranch_vccz L_{name}_ok")
    p.e(f"s_sleep 8\ns_sub_u32 s{tmp_s}, s{tmp_s}, 1\ns_cmp_lg_u32 s{tmp_s}, 0\ns_cbranch_scc1 L_{name}")
    p.label(f"L_{name}_ok")


def flag_store(p, t4, va, so, lanes=3):
    for i in range(4):
        p.e(f"v_mov_b32 v{t4 + i}, s{sEP}")
    p.e(f"s_mov_b64 exec, {lanes}")
    p.e(f"buffer_store_dwordx4 {vr(t4, 4)}, v{va}, {WS}, {so} offen sc1")
    p.e("s_mov_b64 exec, -1")


def prologue():
    p = Prog("pro")
    p.e("s_cmp_ge_u32 s2, 256\ns_cbranch_scc1 L_exit")
    if OPT["stamps"] or "echo" in OPT:
        p.e("s_memrealtime s[90:91]")
    p.e("s_setprio 3")
    p.e("s_load_dwordx16 s[8:23], s[0:1], 0\ns_load_dwordx8 s[24:31], s[0:1], 64\ns_load_dwordx4 s[32:35], s[0:1], 96")
    p.e("v_lshrrev_b32 v1, 6, v0\nv_and_b32 v0, 63, v0")
    p.e(f"v_readfirstlane_b32 s{sW}, v1")
    p.e(f"s_and_b32 s6, s2, 7\ns_lshl_b32 s6, s6, 5\ns_lshr_b32 s7, s2, 3\ns_add_u32 s{sO}, s6, s7")
    p.waitall(vm=False)
    p.e(f"s_load_dword s{sEP}, s[{pWS}:{pWS + 1}], {EPOCH}")
    if OPT.get("cpf", 1):
        p.e(f"s_getpc_b64 s[84:85]\ns_mul_i32 s6, s7, 12\ns_add_u32 s6, s6, s{sW}\ns_lshl_b32 s6, s6, 7\ns_min_u32 s6, s6, L_exit-{NAME}_kernel-256")
        p.e("s_load_dword s86, s[84:85], s6\ns_add_u32 s6, s6, 64\ns_load_dword s87, s[84:85], s6")
    srd(p, 36, pWS, WS_SIZE)
    p.e(f"s_cmp_ge_u32 s{sW}, 8\ns_cbranch_scc1 L_helper")
    return p


aL, aZ, aQ, aP, IDX = 1, 2, 4, 5, 6
X, Q, T, O, S, K, V = 8, 16, 20, 24, 40, 72, 104
aK, aV = T + 1, T + 2
sLAY, sKV0, sPUB, sSC, sRET = 56, 64, 58, 59, 57
MLO, MHI = "s[60:61]", "s[62:63]"


def layernorm(p, x, t):
    s, q = t, t + 1
    p.e(f"v_add_f32 v{s}, v{x}, v{x + 1}\nv_mul_f32 v{q}, v{x}, v{x}")
    p.e(f"v_fmac_f32 v{q}, v{x + 1}, v{x + 1}")
    for i in range(2, 8):
        p.e(f"v_add_f32 v{s}, v{s}, v{x + i}\nv_fmac_f32 v{q}, v{x + i}, v{x + i}")
    for m in ("quad_perm:[1,0,3,2] row_mask:0xf", "quad_perm:[2,3,0,1] row_mask:0xf", "row_half_mirror row_mask:0xf",
              "row_mirror row_mask:0xf", "row_bcast:15 row_mask:0xa", "row_bcast:31 row_mask:0xc"):
        p.e(f"v_add_f32_dpp v{s}, v{s}, v{s} {m} bank_mask:0xf")
        p.e(f"v_add_f32_dpp v{q}, v{q}, v{q} {m} bank_mask:0xf")
    p.e(f"v_mul_f32 v{s}, 0x3b000000, v{s}\nv_mul_f32 v{q}, 0x3b000000, v{q}")
    p.e(f"v_fma_f32 v{q}, -v{s}, v{s}, v{q}\nv_max_f32 v{q}, 0, v{q}\nv_add_f32 v{q}, 0x3727c5ac, v{q}")
    p.e(f"v_rsq_f32 v{q}, v{q}")
    p.e(f"v_mul_f32_e64 v{s}, -v{s}, v{q}")
    p.e(f"v_readlane_b32 s68, v{q}, 63\nv_readlane_b32 s69, v{s}, 63")
    p.e(f"v_mov_b32 v{s}, s69")


def wkv_reads(p):
    t = T
    p.e(f"v_lshrrev_b32 v{t}, 5, v0\nv_lshlrev_b32 v{t}, 4, v{t}")
    p.e(f"v_bfe_u32 v{t + 1}, v0, 4, 1\nv_lshl_add_u32 v{t}, v{t + 1}, 2, v{t}")
    p.e(f"v_bfe_u32 v{t + 1}, v0, 3, 1\nv_lshl_add_u32 v{t}, v{t + 1}, 3, v{t}")
    p.e(f"v_bfe_u32 v{t + 1}, v0, 2, 1\nv_add_u32 v{t}, v{t}, v{t + 1}")
    p.e(f"v_and_b32 v{t + 1}, 3, v0\nv_lshlrev_b32 v{t + 1}, 3, v{t + 1}\nv_lshl_add_u32 v{t}, v{t}, 5, v{t + 1}")
    p.e(f"s_lshl_b32 s6, s{sW}, 14\ns_add_u32 s6, s6, {WKV}\nv_add_u32 v{t}, s6, v{t}")
    for kb in range(8):
        for a in range(4):
            off = (64 * kb + 32 * (a >> 1) + 2 * (a & 1)) * 32
            p.e(f"ds_read_b64_tr_b16 {vr(S + 8 * kb + 2 * a, 2)}, v{t} offset:{off}")


def kv_loads(p, kt):
    so = f"s{sKV0 + (kt >> 1)}"
    im = (kt & 1) * 2048
    p.e(f"buffer_load_dwordx4 {vr(K + 4 * kt, 4)}, v{aK}, {WS}, {so} offen offset:{im} sc1")
    p.e(f"buffer_load_dwordx4 {vr(V + 8 * kt, 4)}, v{aV}, {WS}, {so} offen offset:{im} sc1")


def w_gather(p):
    p.e("v_and_b32 v57, 15, v0\nv_lshrrev_b32 v58, 4, v0")
    p.e(f"s_bfe_u32 s6, s{sO}, 0x20003\ns_lshr_b32 s7, s{sO}, 5\ns_and_b32 s78, s{sO}, 7")
    p.e(f"s_lshl_b32 s79, s6, 6\ns_lshl_b32 s72, s7, 3\ns_add_u32 s79, s79, s72\ns_add_u32 s79, s79, s78\ns_lshl_b32 s79, s79, 5")
    p.e(f"s_cmp_eq_u32 s{sW}, 3\ns_cbranch_scc1 L_a_wo")
    srd(p, 44, pWQ, 0x80000)
    p.e("v_lshrrev_b32 v59, 5, v0\nv_lshlrev_b32 v56, 14, v59\nv_and_b32 v59, 1, v58\nv_lshl_add_u32 v56, v59, 12, v56\nv_lshl_add_u32 v56, v57, 1, v56")
    p.e(f"s_lshl_b32 s72, s78, 16\ns_lshr_b32 s6, s{sO}, 3\ns_lshl_b32 s6, s6, 5\ns_add_u32 s72, s72, s6")
    p.e("s_add_u32 s73, s72, 8192\ns_add_u32 s74, s72, 32768\ns_add_u32 s75, s72, 40960")
    p.e(f"v_mov_b32 v103, v{aQ}\ns_lshl_b32 s76, s{sO}, 11\ns_add_u32 s76, s76, {WQS}\ns_add_u32 s77, s76, 1024\ns_add_u32 s79, s79, {FLAGQ}")
    p.e("s_branch L_a_wg")
    p.label("L_a_wo")
    srd(p, 44, pWO, 0x80000)
    p.e("v_lshlrev_b32 v57, 4, v57\nv_lshl_add_u32 v103, v58, 11, v57\nv_lshl_add_u32 v56, v58, 1, v57")
    p.e("s_lshl_b32 s72, s7, 16\ns_lshl_b32 s73, s78, 13\ns_add_u32 s72, s72, s73\ns_lshl_b32 s73, s6, 8\ns_add_u32 s72, s72, s73")
    p.e("s_add_u32 s73, s72, 4096\ns_add_u32 s74, s72, 8\ns_add_u32 s75, s72, 4104")
    p.e("s_lshl_b32 s76, s7, 16\ns_lshl_b32 s6, s6, 14\ns_add_u32 s76, s76, s6\ns_lshl_b32 s6, s78, 8\ns_add_u32 s76, s76, s6")
    p.e(f"s_add_u32 s76, s76, {WOS}\ns_add_u32 s77, s76, 8192\ns_add_u32 s79, s79, {FLAGO}")
    p.label("L_a_wg")
    for hf in range(2):
        for j in range(4):
            for e in range(2):
                p.e(f"buffer_load_ushort v{40 + 8 * hf + 2 * j + e}, v56, {SB}, s{72 + 2 * hf + (j & 1)} offen offset:{(2 * (j >> 1) + e) * 1024}")


def prep_regs(base):
    return dict(KR=base, VR=base + 11, SH=base + 20, PW=base + 24, KU=base + 29, PU=base + 40, PO=base + 48, PA=base + 56)


def prep_loads(p, R, hw):
    KR, VR, SH, PA = R["KR"], R["VR"], R["SH"], R["PA"]
    srd(p, 44, pBK, 0x200000)
    srd(p, 48, pBV, 0x200000)
    srd(p, 40, pSH, 0x1000)
    p.e(f"v_lshrrev_b32 v{PA}, 3, v0\nv_and_b32 v{PA + 1}, 7, v0")
    p.e(f"v_lshlrev_b32 v{PA + 2}, 13, v{PA}\nv_lshl_add_u32 v{PA + 2}, v{PA + 1}, 2, v{PA + 2}")
    p.e(f"s_and_b32 s6, s{sO}, 31\ns_lshr_b32 s62, s{sO}, 5")
    p.e(f"s_lshl_b32 s6, s6, 16\ns_lshl_b32 s7, s62, 7\ns_add_u32 s6, s6, s7\ns_lshl_b32 s7, s{hw}, 5\ns_add_u32 s60, s6, s7\ns_add_u32 s61, s60, 4096")
    p.e(f"s_sub_u32 s6, s60, 3072\nv_add_u32 v{PA + 3}, s6, v{PA + 2}")
    p.e(f"s_lshl_b32 s6, s62, 9\ns_lshl_b32 s7, s{hw}, 7\ns_add_u32 s6, s6, s7\nv_lshlrev_b32 v{PA + 4}, 4, v{PA + 1}")
    p.e(f"buffer_load_dwordx4 {vr(SH, 4)}, v{PA + 4}, {SA}, s6 offen")
    for r in range(3):
        p.e(f"buffer_load_dword v{KR + r}, v{PA + 3}, {SB}, 0 offen offset:{r * 1024}")
    for r in range(8):
        p.e(f"buffer_load_dword v{KR + 3 + r}, v{PA + 2}, {SB}, s{60 + (r >> 2)} offen offset:{(r & 3) * 1024}")
    for r in range(8):
        p.e(f"buffer_load_dword v{VR + r}, v{PA + 2}, {SC}, s{60 + (r >> 2)} offen offset:{(r & 3) * 1024}")


def prep_compute(p, R, sx):
    KR, VR, SH, PW, KU, PU, PO, PA = (R[k] for k in ("KR", "VR", "SH", "PW", "KU", "PU", "PO", "PA"))
    for c in range(2):
        un = (lambda d, s: f"v_lshlrev_b32 v{d}, 16, v{s}") if c == 0 else (lambda d, s: f"v_and_b32 v{d}, 0xffff0000, v{s}")
        for j in range(2):
            p.e(f"v_lshlrev_b32 v{PW + 2 * j}, 16, v{SH + 2 * c + j}\nv_and_b32 v{PW + 2 * j + 1}, 0xffff0000, v{SH + 2 * c + j}")
        for r in reversed(range(11)):
            p.e(un(KU + r, KR + r))
        for r in reversed(range(8)):
            p.e(f"v_mul_f32 v{PU + r}, v{PW}, v{KU + 3 + r}")
            for j in range(1, 4):
                p.e(f"v_fmac_f32 v{PU + r}, v{PW + j}, v{KU + 3 + r - j}")
            p.e(un(PW + 4, VR + r))
            p.e(f"v_mul_f32 v{PU + r}, v{PU + r}, v{PW + 4}")
        for i in range(4):
            p.e(f"v_cvt_pk_bf16_f32 v{PO + 4 * c + i}, v{PU + 7 - 2 * i}, v{PU + 6 - 2 * i}")
    a2 = PA + 2
    p.e(f"v_xor_b32 v{a2}, 7, v{PA}\nv_xor_b32 v{a2}, v{a2}, v{PA + 1}\nv_lshlrev_b32 v{a2}, 4, v{a2}\nv_lshl_add_u32 v{a2}, v{PA + 1}, 8, v{a2}\nv_add_u32 v{a2}, s{sx}, v{a2}")
    p.e(f"ds_write_b128 v{a2}, {vr(PO, 4)}\nds_write_b128 v{a2}, {vr(PO + 4, 4)} offset:128")


def prep_store(p, R, hw, sx):
    PO, PA = R["PO"], R["PA"]
    a2, a3, a4 = PA + 2, PA + 3, PA + 4
    p.e(f"v_lshrrev_b32 v{PA}, 3, v0\nv_and_b32 v{PA + 1}, 7, v0")
    p.e(f"v_lshrrev_b32 v{a3}, 4, v0\nv_xor_b32 v{a3}, v{a3}, v{PA + 1}\nv_lshlrev_b32 v{a3}, 4, v{a3}\nv_lshl_add_u32 v{a3}, v{PA}, 7, v{a3}\nv_add_u32 v{a3}, s{sx}, v{a3}")
    p.e(f"v_xor_b32 v{a4}, 64, v{a3}")
    p.e(f"ds_read_b128 {vr(PO, 4)}, v{a3}\nds_read_b128 {vr(PO + 4, 4)}, v{a4} offset:1024")
    p.e(f"v_lshlrev_b32 v{a2}, 12, v{PA}\nv_lshl_add_u32 v{a2}, v{PA + 1}, 4, v{a2}")
    p.e(f"s_lshr_b32 s6, s{sO}, 5\ns_lshl_b32 s6, s6, 18\ns_lshl_b32 s7, s{hw}, 16\ns_add_u32 s6, s6, s7\ns_and_b32 s7, s{sO}, 31\ns_lshl_b32 s7, s7, 7")
    p.e(f"s_sub_u32 s6, s6, s7\ns_add_u32 s6, s6, {UR + 3968}\ns_add_u32 s7, s6, 0x8000")
    p.e(f"buffer_store_dwordx4 {vr(PO, 4)}, v{a2}, {WS}, s6 offen sc1")
    return p.e(f"buffer_store_dwordx4 {vr(PO + 4, 4)}, v{a2}, {WS}, s7 offen sc1")


PREP = OPT.get("prep", 1)


def attention_wave():
    p = Prog("attn")
    p.stampreg = "v23"
    retry = Prog("retry")
    t = T
    srd(p, 40, pX, 0x200000)
    p.e(f"v_lshlrev_b32 v{aQ}, 4, v0\nv_mov_b32 v103, 0")
    p.e(f"s_lshl_b32 s6, s{sO}, 3\ns_add_u32 s6, s6, s{sW}\ns_lshl_b32 s70, s6, 10")
    p.e(f"buffer_load_dwordx4 {vr(Q, 4)}, v{aQ}, {SA}, s70 offen")
    p.e("s_setprio 1")
    p.e(f"s_cmp_ge_u32 s{sW}, 4\ns_cbranch_scc1 L_a_nodma")
    p.e(f"s_cmp_ge_u32 s{sW}, 2\ns_cbranch_scc1 L_a_wq")
    p.e(f"s_cmp_eq_u32 s{sW}, 0")
    p.e(f"s_cselect_b32 s44, s{pWK}, s{pWV}\ns_cselect_b32 s45, s{pWK + 1}, s{pWV + 1}\ns_mov_b32 s46, 0x4000\ns_mov_b32 s47, 0x20000")
    p.e(f"s_lshl_b32 s6, s{sW}, 14\ns_add_u32 s6, s6, {WKV}")
    p.e(f"s_lshl_b32 s7, s{sO}, 10")
    for i in range(16):
        p.e("s_and_b32 s7, s7, 0x3c00\ns_add_u32 m0, s6, s7")
        p.e(f"buffer_load_dwordx4 v{aQ}, {SB}, s7 offen lds")
        p.e("s_add_u32 s7, s7, 1024")
    p.e("s_branch L_a_nodma")
    p.label("L_a_wq")
    w_gather(p)
    p.label("L_a_nodma")
    p.e(f"s_lshl_b32 s6, s{sO}, 9\ns_lshl_b32 s7, s{sW}, 8\ns_add_u32 s{sPUB}, s6, s7\ns_add_u32 s{sPUB}, s{sPUB}, {KV1}")
    p.e(f"s_cmp_eq_u32 s{sW}, 0\ns_cselect_b32 s{sSC}, {SCALE}, 1.0")
    p.e(f"v_and_b32 v{t + 1}, 31, v0\nv_lshlrev_b32 v{t + 2}, 4, v{t + 1}")
    p.e(f"v_mov_b32 v{IDX}, 0xdddd\nv_mov_b32 v{aZ}, 0\nv_mov_b32 v{aZ + 1}, 0")
    p.e(f"s_lshl_b32 s6, s{sW}, 11\ns_add_u32 s6, s6, {PB}\nv_add_u32 v{aP}, s6, v{aQ}")
    p.e(f"s_lshr_b32 s6, s{sW}, 2\ns_lshl_b32 s6, s6, 9\ns_and_b32 s7, s{sW}, 3\ns_lshl_b32 s7, s7, 2\ns_add_u32 s6, s6, s7\ns_add_u32 s6, s6, {LP}")
    p.e(f"v_add_u32 v{aL}, s6, v{t + 2}")
    p.e(f"s_sub_u32 s71, s{sW}, 4\ns_lshl_b32 s80, s71, 12\ns_add_u32 s80, s80, {SX}")
    p.e(f"s_mov_b32 s{sLAY}, 0\ns_lshl_b32 s6, s{sW}, 14\ns_add_u32 s{sKV0}, s6, {KV1}")
    if OPT["stamps"]:
        p.e("v_mov_b32 v23, 0\nv_writelane_b32 v23, s90, 0")
    if "echo" in OPT:
        p.e("s_mov_b32 s94, s90")
    p.waitall()
    p.e(f"s_add_u32 s{sEP}, s{sEP}, 0x9e3779b1")
    stamp(p, 1)
    p.e(f"ds_write_b64 v{aZ}, {vr(aZ, 2)}\nds_write_b64 v{aZ}, {vr(aZ, 2)} offset:8")
    p.e(f"ds_write_b64 v{aZ}, {vr(aZ, 2)} offset:{QRDY}\nds_write_b64 v{aZ}, {vr(aZ, 2)} offset:{QRDY + 8}")
    p.e(f"s_cmp_ge_u32 s{sW}, 4\ns_cbranch_scc1 L_a_r4")
    p.e(f"s_cmp_ge_u32 s{sW}, 2\ns_cbranch_scc1 L_a_r2")
    wkv_reads(p)
    p.e("s_branch L_a_r")
    p.label("L_a_r2")
    for hf in range(2):
        for j in range(4):
            p.e(f"v_lshl_or_b32 v{60 + 4 * hf + j}, v{41 + 8 * hf + 2 * j}, 16, v{40 + 8 * hf + 2 * j}")
        p.e(f"buffer_store_dwordx4 {vr(60 + 4 * hf, 4)}, v103, {WS}, s{76 + hf} offen sc1")
    p.e("s_branch L_a_r")
    p.label("L_a_r4")
    if PREP == 0:
        prep_loads(p, prep_regs(40), 71)
    p.label("L_a_r")
    p.q["vm"] = []
    p.pend = {}
    for i in range(4):
        p.e(f"v_lshlrev_b32 v{X + 2 * i}, 16, v{Q + i}\nv_and_b32 v{X + 2 * i + 1}, 0xffff0000, v{Q + i}")
    p.label("L_a_layer")
    layernorm(p, X, T)
    for i in range(8):
        p.e(f"v_fma_f32 v{O + i}, v{X + i}, s68, v{T}")
    for i in range(4):
        p.e(f"v_cvt_pk_bf16_f32 v{Q + i}, v{O + 2 * i}, v{O + 2 * i + 1}")
    p.e(f"v_bfe_u32 v{t}, v0, 1, 2\nv_xor_b32 v{t + 1}, s{sW}, v{t}\nv_lshlrev_b32 v{t + 1}, 5, v{t + 1}")
    p.e(f"v_lshl_add_u32 v{t + 1}, v{t}, 8, v{t + 1}\nv_and_b32 v{t}, 1, v0\nv_lshl_add_u32 v{t + 1}, v{t}, 4, v{t + 1}")
    p.e(f"v_lshrrev_b32 v{t}, 3, v0\nv_lshl_add_u32 v{t + 1}, v{t}, 10, v{t + 1}")
    p.e(f"ds_write_b128 v{t + 1}, {vr(Q, 4)} offset:{XN}")
    p.waitall(vm=False)
    p.bar("XN")
    stamp(p, 2)
    p.e(f"s_cmp_ge_u32 s{sW}, 2\ns_cbranch_scc1 L_a_nokv")
    p.begin_if("kv")
    p.e(f"v_lshrrev_b32 v{t}, 4, v0\nv_lshlrev_b32 v{t + 1}, 5, v{t}\nv_xor_b32 v{t + 1}, v{t + 1}, v{aQ}")
    for kb in range(8):
        p.e(f"ds_read_b128 {vr(V + 4 * kb, 4)}, v{t + 1} offset:{XN + kb * 1024}")
    p.e(f"v_and_b32 v{t + 2}, 1, v0\nv_mul_u32_u24 v{t + 2}, 0xaaaa, v{t + 2}\nv_add_u32 v{t + 2}, 0x4444, v{t + 2}")
    p.e(f"v_mov_b64 {vr(O, 2)}, 0\nv_mov_b64 {vr(O + 2, 2)}, 0")
    p.e(f"v_bfe_u32 v{O + 4}, v0, 3, 1\nv_lshlrev_b32 v{O + 4}, 7, v{O + 4}\nv_lshl_add_u32 v{O + 4}, v{t}, 5, v{O + 4}")
    p.e(f"v_and_b32 v{O + 5}, 7, v0\nv_lshl_add_u32 v{O + 4}, v{O + 5}, 1, v{O + 4}\nv_add_u32 v{O + 5}, 16, v{O + 4}")
    p.e(f"s_cmp_eq_u32 s{sW}, 0\ns_cbranch_scc1 L_a_isk")
    p.e(f"v_and_b32 v{O + 4}, 15, v0\nv_lshlrev_b32 v{O + 4}, 4, v{O + 4}\nv_lshl_add_u32 v{O + 4}, v{t}, 2, v{O + 4}")
    p.e(f"v_add_u32 v{O + 4}, 256, v{O + 4}\nv_add_u32 v{O + 5}, 2, v{O + 4}")
    p.label("L_a_isk")
    p.e(f"s_lshl_b32 s6, s{sW}, 8\nv_add_u32 v{O + 6}, s6, v{aQ}")
    for kb in range(8):
        p.e(f"v_smfmac_f32_16x16x64_bf16 {vr(O, 4)}, {vr(V + 4 * kb, 4)}, {vr(S + 8 * kb, 8)}, v{t + 2}")
    p.e(f"v_add_f32 v{O}, v{O}, v{O + 1}\nv_add_f32 v{O + 2}, v{O + 2}, v{O + 3}")
    p.e(f"v_mul_f32 v{O}, s{sSC}, v{O}\nv_mul_f32 v{O + 2}, s{sSC}, v{O + 2}")
    p.e(f"v_cvt_pk_bf16_f32 v{O}, v{O}, v{O + 2}")
    p.e(f"ds_write_b16 v{O + 4}, v{O} offset:{KVST}\nds_write_b16_d16_hi v{O + 5}, v{O} offset:{KVST}")
    p.e("s_mov_b64 exec, 0xffff")
    p.e(f"ds_read_b128 {vr(Q, 4)}, v{O + 6} offset:{KVST}")
    p.e(f"buffer_store_dwordx4 {vr(Q, 4)}, v{aQ}, {WS}, s{sPUB} offen sc1")
    p.e("s_mov_b64 exec, -1")
    p.end_if()
    p.label("L_a_nokv")
    stamp(p, 3)

    p.e(f"v_and_b32 v{t}, 11, v0\nv_cmp_eq_u32 vcc, 0, v{t}\nv_mov_b32 v{t}, 0x3f803f80")
    p.e(f"v_cndmask_b32 v{V + 4}, 0, v{t}, vcc")
    p.e(f"v_mov_b32 v{V + 5}, v{V + 4}")
    for i in range(1, 16):
        p.e(f"v_mov_b64 {vr(V + 8 * (i >> 1) + 4 + 2 * (i & 1), 2)}, {vr(V + 4, 2)}")
    for i in range(1, 4):
        p.e(f"s_add_u32 s{sKV0 + i}, s{sKV0}, {i * 4096}")
    p.e(f"s_mov_b32 s{sRET}, {SPIN}")
    p.e(f"v_bfe_u32 v{t}, v0, 3, 2\nv_lshlrev_b32 v{aK}, 9, v{t}")
    p.e(f"v_and_b32 v{t}, 7, v0\nv_lshl_add_u32 v{aK}, v{t}, 4, v{aK}")
    p.e(f"v_and_b32 v{aV}, 15, v0\nv_lshlrev_b32 v{aV}, 4, v{aV}\nv_bfe_u32 v{t}, v0, 4, 1\nv_lshl_add_u32 v{aV}, v{t}, 10, v{aV}\nv_lshrrev_b32 v{t}, 5, v0")
    p.e(f"v_lshl_add_u32 v{aK}, v{t}, 7, v{aK}\nv_lshl_add_u32 v{aV}, v{t}, 9, v{aV}\nv_add_u32 v{aV}, 256, v{aV}")
    if PREP < 3:
        p.e(f"s_lshr_b32 s6, s{sW}, 2\ns_cmp_le_u32 s6, s{sLAY}\ns_cbranch_scc1 L_a_noprep")
        if PREP == 1:
            prep_loads(p, prep_regs(40), 71)
        p.e("s_barrier ; PUB")
        if PREP == 2:
            prep_loads(p, prep_regs(40), 71)
        p.waitall(lg=False)
        prep_compute(p, prep_regs(40), 80)
        p.e("s_branch L_a_ld")
        p.label("L_a_noprep")
    p.waitall()
    p.e(f"s_lshr_b32 s6, s{sW}, 1\ns_lshl_b32 s7, s{sLAY}, 2\ns_add_u32 s6, s6, s7\ns_cmp_lg_u32 s6, 1\ns_cbranch_scc1 L_a_notag")
    flag_store(p, O, aQ, "s79")
    p.label("L_a_notag")
    p.bar("PUB")
    p.q["vm"] = []
    p.label("L_a_ld")
    stamp(p, 4)
    p.e("s_setprio 3")
    for kt in range(8):
        kv_loads(p, kt)
    p.e("s_setprio 0")
    for i in range(8):
        p.e(f"v_mov_b64 {vr(O + 2 * i, 2)}, 0")
    p.waitall(vm=False)
    p.label("L_a_q0")
    p.e(f"ds_read_b128 {vr(Q, 4)}, v{aZ} offset:{QRDY}")
    p.e(f"v_min3_u32 v{Q}, v{Q}, v{Q + 1}, v{Q + 2}\nv_min_u32 v{Q}, v{Q}, v{Q + 3}\nv_cmp_lt_u32 vcc, s{sLAY}, v{Q}")
    p.e("s_cbranch_vccnz L_a_q0ok\ns_sleep 1\ns_branch L_a_q0")
    p.label("L_a_q0ok")
    p.e(f"ds_read_b128 {vr(Q, 4)}, v{aQ} offset:{QF}")

    def check(kt):
        p.e(f"v_max_u32 v{T}, v{K + 4 * kt}, v{V + 8 * kt}")
        p.e(f"v_cmp_eq_u32 vcc, -1, v{T}")
        p.e(f"s_cbranch_vccnz L_a_retry{kt}")
        p.label(f"L_a_back{kt}")
        r = retry
        r.label(f"L_a_retry{kt}")
        r.e(f"s_sub_u32 s{sRET}, s{sRET}, 1\ns_cmp_lt_i32 s{sRET}, 0\ns_cbranch_scc1 L_a_back{kt}")
        r.e(f"s_sleep {OPT.get('d2', 6)}")
        kv_loads(r, kt)
        r.waitall(lg=False)
        r.e(f"v_max_u32 v{T}, v{K + 4 * kt}, v{V + 8 * kt}")
        r.e(f"v_cmp_eq_u32 vcc, -1, v{T}")
        r.e(f"s_cbranch_vccnz L_a_retry{kt}\ns_branch L_a_back{kt}")

    def vswap(kt):
        for i in range(4):
            p.e(f"v_permlane16_swap_b32 v{V + 8 * kt + i}, v{V + 8 * kt + 4 + i}")

    def Sb(i):
        return S + 16 * (i & 1)

    def qk(kt):
        p.e(f"v_mfma_f32_32x32x16_bf16 {vr(Sb(kt), 16)}, {vr(K + 4 * kt, 4)}, {vr(Q, 4)}, 0")

    def pv(kt, s):
        p.e(f"v_smfmac_f32_32x32x32_bf16 {vr(O, 16)}, {vr(V + 8 * kt + 4 * s, 4)}, {vr(Sb(kt) + 8 * s, 8)}, v{IDX}")

    def put_partial():
        p.e(f"ds_write_b128 v{aP}, {vr(O, 4)}\nds_write_b128 v{aP}, {vr(O + 4, 4)} offset:1024\nds_write_b32 v{aL}, v{O + 8}")

    check(0)
    qk(0)
    vswap(0)
    stamp(p, 5)
    for j in range(8):
        for kt in range(8):
            first = j > 0 and kt == 0
            last = j == 7 and kt == 7
            for e in range(16):
                p.e(f"v_exp_f32 v{Sb(kt) + e}, v{Sb(kt) + e}")
                if e == 1 and not (j == 0 and kt == 0): pv((kt - 1) % 8, 1)
                if e == 4 and not last:
                    if j == 0 and kt < 7: check(kt + 1)
                    qk((kt + 1) % 8)
                    if j == 0 and kt < 7: vswap(kt + 1)
                    if kt == 6 and j < 7:
                        p.e(f"ds_read_b128 {vr(Q, 4)}, v{aQ} offset:{QF + (j + 1) * 1024}")
                if e == (12 if first else 9): pv(kt, 0)
                if e == 8 and first:
                    put_partial()
                    p.e(f"v_mfma_f32_32x32x8bf16_1k {vr(O, 16)}, {vr(aZ, 2)}, {vr(aZ, 2)}, 0")
                    p.e("s_setprio 0")
            if j > 0 and kt == 1:
                p.waitall(vm=False)
                p.bar(f"Y{j}")
            if kt == 5:
                p.bar(f"X{j}")
                p.e("s_setprio 1")
    pv(7, 1)
    put_partial()
    p.waitall()
    p.e("s_setprio 0")
    p.bar("Y8")
    stamp(p, 6)
    Yr = O
    p.bar("X8")
    for i in range(4):
        p.e(f"v_mov_b64 {vr(Yr + 2 * i, 2)}, 0")
    p.e(f"s_lshl_b32 s6, s{sW}, 1\nv_add_u32 v{t}, s6, v{aQ}")
    for i in range(8):
        p.e(f"ds_read_u16_d16_hi v{Yr + i}, v{t} offset:{YB + i * 1024}")
    p.e(f"s_mul_i32 s6, s{sW}, {RS}\ns_add_u32 s6, s6, {PB}\nv_lshlrev_b32 v{t + 2}, 5, v0\nv_add_u32 v{t + 2}, s6, v{t + 2}")
    p.e(f"s_lshl_b32 s6, s{sLAY}, 1\ns_add_u32 s6, s6, s{sW}\ns_cmp_ge_u32 s6, 2\ns_cbranch_scc1 L_a_nowkv")
    p.begin_if("wkv1")
    wkv_reads(p)
    p.end_if()
    p.label("L_a_nowkv")
    p.bar("OUT")
    p.e(f"ds_read_b128 {vr(O + 8, 4)}, v{t + 2}\nds_read_b128 {vr(O + 12, 4)}, v{t + 2} offset:16")
    stamp(p, 7)
    for i in range(8):
        p.e(f"v_add_f32 v{X + i}, v{X + i}, v{O + 8 + i}")
    layernorm(p, X, T)
    for i in range(8):
        p.e(f"v_fma_f32 v{O + 8 + i}, v{X + i}, s68, v{T}")
    for i in range(8):
        p.e(f"v_fmac_f32 v{X + i}, v{O + 8 + i}, v{Yr + i}")
    p.e(f"s_cmp_lg_u32 s{sLAY}, 0\ns_cbranch_scc1 L_a_final")
    p.e(f"s_mov_b32 s{sLAY}, 1\ns_add_u32 s{sPUB}, s{sPUB}, {KV2 - KV1}\ns_add_u32 s{sKV0}, s{sKV0}, {KV2 - KV1}")
    if OPT["stamps"]:
        p.e("s_nop 1\nv_mov_b32_dpp v22, v23 row_shr:8 row_mask:0xf bank_mask:0xf\ns_mov_b64 exec, 0xff00\nv_mov_b32 v23, v22\ns_mov_b64 exec, -1")
    p.e("s_branch L_a_layer")
    p.label("L_a_final")
    for i in range(4):
        p.e(f"v_cvt_pk_bf16_f32 v{Q + i}, v{X + 2 * i}, v{X + 2 * i + 1}")
    srd(p, 40, pOUT, 0x200000)
    p.e(f"buffer_store_dwordx4 {vr(Q, 4)}, v{aQ}, {SA}, s70 offen")
    p.e(f"s_or_b32 s6, s{sO}, s{sW}\ns_cmp_lg_u32 s6, 0\ns_cbranch_scc1 L_a_end")
    p.e(f"v_mov_b32 v{t}, s{sEP}\ns_mov_b64 exec, 1")
    p.e(f"buffer_store_dword v{t}, v{aZ}, {WS}, 0 offen")
    p.e("s_mov_b64 exec, -1")
    p.label("L_a_end")
    stamp(p, 0)
    stamp_flush(p)
    if "echo" in OPT:
        p.e("s_add_u32 s94, s94, 7000")
        p.label("L_echo")
        p.e("s_sleep 1\ns_memrealtime s[92:93]")
        p.waitall(vm=False)
        p.e("s_sub_u32 s6, s94, s92\ns_cmp_gt_i32 s6, 0\ns_cbranch_scc1 L_echo")
    p.e("s_endpgm")
    p.ins += retry.ins
    return p


hW, hIDX, hXN, hQW, hPR, hLR, hOW, hMX, hH, hU, hZ = 1, 2, 3, 4, 5, 6, 7, 9, 10, 11, 15
hT0 = 12
OACC, QACC, AF, HT, SACC, RING = 16, 48, 52, 60, 84, 116
sH, sHB, sD, sSO = 56, 57, 58, 59


class Stream:
    def __init__(self, p, frags, slots):
        self.p, self.frags, self.free = p, frags, list(slots)
        self.next_issue = 0
        self.inflight = []
        self.cur_so = None
        self.retired = set()
        self.limit = len(frags)

    def pump(self, maxn=99):
        n = 0
        while self.free and self.next_issue < self.limit and n < maxn:
            off = self.frags[self.next_issue]
            slot = self.free.pop(0)
            base = off & ~4095
            if base != self.cur_so:
                self.p.e(f"s_add_u32 s{sSO}, s{sHB}, {base}")
                self.cur_so = base
            for J in range(2):
                self.p.e(f"buffer_load_dwordx4 {vr(slot + 4 * J, 4)}, v{hW}, {WS}, s{sSO} offen offset:{(off & 4095) + J * 1024} sc1")
            self.inflight.append(slot)
            self.next_issue += 1
            n += 1

    def take(self):
        return self.inflight.pop(0)

    def release(self, slot, pump=True):
        if slot not in self.retired:
            self.free.append(slot)
        if pump:
            self.pump()


def merge(a, b):
    a, b = list(a), list(b)
    i = j = 0
    while i < len(a) or j < len(b):
        if j >= len(b) or (i < len(a) and i * len(b) <= j * len(a)):
            a[i](); i += 1
        else:
            b[j](); j += 1


def helper_wave():
    p = Prog("help")
    p.stampreg = "v8"
    slow = Prog("hslow")
    t = hT0

    def wqn():
        srd(p, 40, pWQ, 0x80000)
        p.e("v_lshlrev_b32 v62, 1, v14\nv_and_b32 v63, 7, v0\nv_xor_b32 v62, v62, v63\nv_lshlrev_b32 v62, 4, v62")
        p.e("v_lshrrev_b32 v63, 3, v0\nv_lshl_add_u32 v62, v63, 10, v62\nv_xor_b32 v63, 64, v62")
        p.e(f"s_lshl_b32 s6, s{sH}, 17\ns_add_u32 s7, s{sHB}, {WQN}")
        p.e(f"s_lshl_b32 s61, s{sO}, 11")
        for i in range(16):
            p.e("s_and_b32 s61, s61, 0x3c00\ns_add_u32 m0, s7, s61\ns_lshl_b32 s60, s61, 3\ns_add_u32 s60, s60, s6")
            p.e(f"buffer_load_dwordx4 v{62 + (i & 1)}, {SA}, s60 offen lds")
            p.e("s_add_u32 s61, s61, 1024")

    p.label("L_helper")
    p.e(f"s_sub_u32 s{sH}, s{sW}, 8\ns_lshl_b32 s{sHB}, s{sH}, 14")
    p.e(f"v_lshlrev_b32 v{hW}, 4, v0\nv_mov_b32 v{hZ}, 0")
    p.e(f"s_lshl_b32 s6, s{sO}, 2\ns_load_dword s{sD}, s[{pSD}:{pSD + 1}], s6")
    p.e(f"v_and_b32 v60, 31, v0\nv_lshlrev_b32 v60, 4, v60\nv_lshrrev_b32 v61, 5, v0\nv_lshl_add_u32 v60, v61, 17, v60")
    p.e(f"v_mov_b64 v[64:65], -1\nv_mov_b64 v[66:67], -1\ns_lshl_b32 s6, s{sO}, 9\ns_add_u32 s6, s6, {KV1}")
    p.e(f"s_cmp_lg_u32 s{sH}, 0\ns_cbranch_scc1 L_h_noclr")
    ctok = p.e(f"buffer_store_dwordx4 v[64:67], v60, {WS}, s6 offen sc1")
    p.label("L_h_noclr")
    p.e("s_setprio 0")
    p.e(f"s_lshr_b32 s70, s{sH}, 1\ns_and_b32 s71, s{sH}, 1\ns_lshl_b32 s6, s{sO}, 1\ns_add_u32 s72, s6, s70")
    p.e(f"s_lshl_b32 s6, s72, 12\ns_add_u32 s52, s{pSK}, s6\ns_addc_u32 s53, s{pSK + 1}, 0\ns_mov_b32 s54, 0x1000\ns_mov_b32 s55, 0x20000")
    p.e(f"s_mul_i32 s73, s{sH}, {2 * CS}\ns_add_u32 s73, s73, {HB}")
    p.e(f"s_mul_i32 s74, s{sH}, 3072\ns_add_u32 s74, s74, {UB}")
    p.e(f"s_lshl_b32 s75, s{sH}, 12\ns_add_u32 s75, s75, {SX}")
    p.e(f"v_and_b32 v30, 31, v0\nv_and_b32 v{t + 1}, 7, v0")
    p.e(f"v_and_b32 v{hIDX}, 1, v0\nv_mul_u32_u24 v{hIDX}, 0xaaaa, v{hIDX}\nv_add_u32 v{hIDX}, 0x4444, v{hIDX}")
    p.e(f"v_lshrrev_b32 v{t}, 4, v0\nv_lshlrev_b32 v{hXN}, 5, v{t}\nv_xor_b32 v{hXN}, v{hXN}, v{hW}")
    p.e(f"v_bfe_u32 v{hQW}, v0, 3, 1\nv_lshlrev_b32 v{hQW}, 9, v{hQW}\nv_lshl_add_u32 v{hQW}, v{t}, 5, v{hQW}")
    p.e(f"v_lshl_add_u32 v{hQW}, v{t + 1}, 1, v{hQW}\ns_lshl_b32 s6, s{sH}, 7\nv_add_u32 v{hQW}, s6, v{hQW}")
    p.e(f"s_lshl_b32 s6, s70, 10\ns_lshl_b32 s7, s71, 3\ns_add_u32 s6, s6, s7\ns_add_u32 s6, s6, {PB}\nv_add_u32 v{hPR}, s6, v{hW}")
    p.e(f"v_lshlrev_b32 v{hLR}, 4, v30")
    p.e(f"v_lshrrev_b32 v{t + 2}, 5, v0\nv_lshlrev_b32 v{hOW}, 5, v30\nv_lshl_add_u32 v{hOW}, v{t + 2}, 4, v{hOW}")
    p.e(f"s_lshl_b32 s6, s{sH}, 2\nv_add_u32 v{hOW}, s6, v{hOW}\nv_mov_b32 v{hMX}, 0")
    p.e(f"v_add_u32 v60, 1, v30\nv_and_b32 v61, 3, v60\nv_sub_u32 v60, v60, v61\nv_mul_u32_u24 v61, {CS}, v61")
    p.e(f"v_lshl_add_u32 v61, v60, 1, v61\nv_lshl_add_u32 v61, v{t + 2}, 4, v61")
    p.e(f"s_mul_i32 s6, s70, {4 * CS}\ns_lshl_b32 s7, s71, 10\ns_add_u32 s6, s6, s7\ns_add_u32 s6, s6, {HB}\nv_add_u32 v{hH}, s6, v61")
    p.e(f"v_sub_u32 v60, 31, v30\nv_lshlrev_b32 v60, 4, v60\nv_mul_u32_u24 v61, 1536, v{t + 2}\nv_add_u32 v60, v60, v61")
    p.e(f"s_mul_i32 s76, s70, 6144\ns_add_u32 s76, s76, {UB}\ns_lshl_b32 s7, s71, 8\ns_add_u32 s6, s76, s7\nv_add_u32 v{hU}, s6, v60")
    p.e(f"v_lshlrev_b32 v166, 5, v0\nv_lshlrev_b32 v167, 5, v30\ns_lshl_b32 s77, s{sH}, 11\ns_add_u32 s83, s77, {FLAGO}\ns_add_u32 s77, s77, {FLAGQ}")
    p.e(f"s_lshr_b32 s6, s{sO}, 3\ns_lshl_b32 s6, s6, 10\ns_add_u32 s79, s6, {FLAGU}")
    p.waitall(vm=False)
    p.e(f"s_add_u32 s{sEP}, s{sEP}, 0x9e3779b1")
    p.e(f"s_lshl_b32 s6, s{sD}, 16\ns_and_b32 s7, s{sD}, 0xffff0000\ns_cmp_eq_u32 s70, 0\ns_cselect_b32 s{sD}, s6, s7")
    if OPT["stamps"]:
        p.e("v_mov_b32 v8, 0\nv_writelane_b32 v8, s90, 0")
    p.e(f"s_cmp_lg_u32 s{sH}, 0\ns_cbranch_scc1 L_h_noann")
    p.wait(ctok)
    p.e(f"s_lshl_b32 s6, s{sO}, 7\ns_add_u32 s6, s6, {FLAGC}")
    flag_store(p, 64, hW, "s6", 255)
    p.label("L_h_noann")
    if OPT.get("wqn", 0) == 0:
        wqn()
    for i in range(16):
        p.e(f"v_mov_b64 {vr(OACC + 2 * i, 2)}, 0")
    p.e(f"v_lshlrev_b32 v60, 4, v{t + 2}\nv_bfe_u32 v61, v0, 4, 1\nv_bfe_u32 v62, v0, 3, 1\nv_lshl_add_u32 v61, v62, 1, v61")
    p.e("v_lshl_add_u32 v60, v61, 2, v60\nv_bfe_u32 v62, v0, 2, 1\nv_add_u32 v60, v60, v62\nv_lshlrev_b32 v60, 7, v60")
    p.e(f"v_xor_b32 v61, s{sH}, v61\nv_lshl_add_u32 v60, v61, 5, v60\nv_and_b32 v62, 3, v0\nv_lshl_add_u32 v60, v62, 3, v60\nv_add_u32 v60, {WQN}, v60")
    stamp(p, 1)
    p.e("s_setprio 2")
    p.bar("XN")
    if OPT.get("wqn", 0) == 1:
        wqn()
    p.e(f"v_lshlrev_b32 v63, 7, v0\ns_lshl_b32 s60, s{sH}, 13\ns_add_u32 s60, s60, {FLAGC}")
    poll(p, "h_fc", f"buffer_load_dword v164, v63, {WS}, s60 offen sc1", [164], 78)
    stamp(p, 2)
    p.bar("PUB")
    stamp(p, 3)

    frags = []
    for L in range(2):
        order = ["Q0", "Q1", "Q2", "O0", "Q3", "O1", "Q4", "O2", "Q5", "O3", "Q6", "O4", "Q7", "O5", "O6", "O7"]
        for nm in order:
            base = (WQS if nm[0] == "Q" else WOS) + int(nm[1]) * 65536
            frags += [base + i * 2048 for i in range(8)]
    sacc_slots = [SACC + 8 * i for i in range(4)]
    st = Stream(p, frags, sacc_slots + [RING + 8 * i for i in range(6)])
    st.retired = set(sacc_slots)
    st.limit = 8
    for kb in range(8):
        slot = st.free.pop(0)
        for a in range(4):
            p.e(f"ds_read_b64_tr_b16 {vr(slot + 2 * a, 2)}, v60 offset:{(64 * kb + 32 * (a >> 1) + 2 * (a & 1)) * 128}")
        st.inflight.append(slot)
    st.next_issue = 8

    def qproj(tile):
        def head():
            p.e(f"ds_read_b128 {vr(QACC, 4)}, v{hZ}")
            p.e(f"ds_read_b128 {vr(AF, 4)}, v{hXN} offset:{XN}")
        yield head
        for kb in range(8):
            def step(kb=kb):
                if kb < 7:
                    p.e(f"ds_read_b128 {vr(AF + 4 * ((kb + 1) & 1), 4)}, v{hXN} offset:{XN + (kb + 1) * 1024}")
                s = st.take()
                p.e(f"v_smfmac_f32_16x16x64_bf16 {vr(QACC, 4)}, {vr(AF + 4 * (kb & 1), 4)}, {vr(s, 8)}, v{hIDX}")
                st.release(s)
            yield step

        def fin():
            p.e(f"v_add_f32 v{t}, v{QACC}, v{QACC + 1}\nv_add_f32 v{t + 1}, v{QACC + 2}, v{QACC + 3}")
            p.e(f"v_cvt_pk_bf16_f32 v{t}, v{t}, v{t + 1}")
            p.e(f"ds_write_b16 v{hQW}, v{t} offset:{QF + tile * 1024}\nds_write_b16_d16_hi v{hQW}, v{t} offset:{QF + tile * 1024 + 16}")
        yield fin

    def reduce():
        a, L = HT, HT + 16
        p.e(f"ds_read_b128 {vr(L, 4)}, v{hLR} offset:{LP}\nds_read_b128 {vr(L + 4, 4)}, v{hLR} offset:{LP + 512}")
        for w in range(8):
            p.e(f"ds_read_b64 {vr(a + 2 * w, 2)}, v{hPR} offset:{w * 2048}")
        for i in range(1, 8):
            p.e(f"v_add_f32 v{L}, v{L}, v{L + i}")
        p.e(f"v_rcp_f32 v{L + 1}, v{L}")
        p.waitall(vm=False)
        for w in range(1, 8):
            p.e(f"v_add_f32 v{a}, v{a}, v{a + 2 * w}\nv_add_f32 v{a + 1}, v{a + 1}, v{a + 2 * w + 1}")
        p.e(f"v_mul_f32 v{a}, v{a}, v{L + 1}\nv_mul_f32 v{a + 1}, v{a + 1}, v{L + 1}")
        p.e(f"v_cvt_pk_bf16_f32 v{a}, v{a}, v{a + 1}")
        p.e(f"ds_write_b32 v{hOW}, v{a} offset:{OA}")
        p.e(f"v_max3_f32 v{hMX}, v{hMX}, v{L}, v{L + 1}")

    def oproj(pump=True):
        yield lambda: p.e(f"ds_read_b128 {vr(AF, 4)}, v{hW} offset:{OA}")
        for ct in range(8):
            def step(ct=ct):
                s = st.take()
                p.e(f"v_smfmac_f32_16x16x64_bf16 {vr(OACC + 4 * ct, 4)}, {vr(AF, 4)}, {vr(s, 8)}, v{hIDX}")
                st.release(s, pump)
            yield step

    def ssm(i0, n):
        Al, Ah, B0, B1 = HT, HT + 4, HT + 8, HT + 12
        D0, D1 = SACC, SACC + 16

        def boff(i):
            b8 = 2 * i - 4
            return (b8 & 3) * 1536 + ((b8 >> 2) + 1) * 16

        rAl = lambda i: p.e(f"ds_read_b64 {vr(Al, 2)}, v{hH} offset:{32 * i}\nds_read_b64 {vr(Al + 2, 2)}, v{hH} offset:{32 * i + 8}")
        rAh = lambda i: p.e(f"ds_read_b64 {vr(Ah, 2)}, v{hH} offset:{32 * i + 2048}\nds_read_b64 {vr(Ah + 2, 2)}, v{hH} offset:{32 * i + 2056}")
        rB0 = lambda i: p.e(f"ds_read_b128 {vr(B0, 4)}, v{hU} offset:{boff(i) + 512}")
        rB1 = lambda i: p.e(f"ds_read_b128 {vr(B1, 4)}, v{hU} offset:{boff(i)}")
        if n:
            yield lambda: (rB1(i0), rAl(i0), rB0(i0), rAh(i0))
        for i in range(i0, i0 + n):
            more = i + 1 < i0 + n

            def m1(i=i, more=more):
                p.e(f"v_mfma_f32_32x32x16_bf16 {vr(D1, 16)}, {vr(Al, 4)}, {vr(B1, 4)}, {vr(D1, 16) if i else 0}")
                if more: rB1(i + 1)

            def m2(i=i, more=more):
                p.e(f"v_mfma_f32_32x32x16_bf16 {vr(D0, 16)}, {vr(Al, 4)}, {vr(B0, 4)}, {vr(D0, 16) if i else 0}")
                if more: rAl(i + 1)

            def m3(i=i, more=more):
                p.e(f"v_mfma_f32_32x32x16_bf16 {vr(D1, 16)}, {vr(Ah, 4)}, {vr(B0, 4)}, {vr(D1, 16)}")
                if more: rB0(i + 1); rAh(i + 1)
            yield m1
            yield m2
            yield m3

    def ssm_send():
        p.e(f"v_add_u32 v{t}, s75, v{hW}")
        p.e("s_nop 7\ns_nop 3")
        p.waitall(vm=False)
        p.e("s_cmp_eq_u32 s71, 0\ns_cbranch_scc1 L_h_s0")
        for i in range(4):
            p.e(f"ds_write_b128 v{t}, {vr(SACC + 4 * i, 4)} offset:{i * 1024}")
        p.e("s_branch L_h_s1")
        p.label("L_h_s0")
        for i in range(4):
            p.e(f"ds_write_b128 v{t}, {vr(SACC + 16 + 4 * i, 4)} offset:{i * 1024}")
        p.label("L_h_s1")
        p.waitall(vm=False)

    ytok = [None]

    def ssm_finish():
        R = HT

        def a0():
            p.e(f"s_xor_b32 s82, s{sH}, 1\ns_lshl_b32 s82, s82, 12\ns_add_u32 s82, s82, {SX}\nv_add_u32 v164, s82, v{hW}")
            for i in range(4):
                p.e(f"ds_read_b128 {vr(R + 4 * i, 4)}, v164 offset:{i * 1024}")
            p.e(f"v_lshrrev_b32 v{t + 2}, 5, v0\nv_lshl_add_u32 v164, v{t + 2}, 3, v{hLR}")
            p.e(f"s_lshl_b32 s7, s71, 9\ns_sub_u32 s7, s76, s7\ns_add_u32 s7, s7, {63 * 16 + 8}\nv_sub_u32 v164, s7, v164")
            for b in range(4):
                p.e(f"ds_read_b64 {vr(R + 16 + 2 * b, 2)}, v164 offset:{(3 - b) * 1536}")
        yield a0

        def a1():
            p.waitall(vm=False)
            p.e("s_cmp_eq_u32 s71, 0\ns_cbranch_scc1 L_h_f0")
            for i in range(16):
                p.e(f"v_add_f32 v{R + i}, v{R + i}, v{SACC + 16 + i}")
            p.e("s_branch L_h_f1")
            p.label("L_h_f0")
            for i in range(16):
                p.e(f"v_add_f32 v{R + i}, v{R + i}, v{SACC + i}")
            p.label("L_h_f1")
            p.e(f"v_mul_u32_u24 v164, 5, v{hLR}\nv_lshl_add_u32 v164, v{t + 2}, 3, v164\nv_add_u32 v164, s82, v164")
        yield a1
        for b in range(4):
            def ab(b=b):
                u0, u1 = R + 16 + 2 * b, R + 17 + 2 * b
                p.e(f"v_and_b32 v165, 0xffff0000, v{u1}\nv_fmac_f32 v{R + 4 * b}, s{sD}, v165")
                p.e(f"v_lshlrev_b32 v165, 16, v{u1}\nv_fmac_f32 v{R + 4 * b + 1}, s{sD}, v165")
                p.e(f"v_and_b32 v165, 0xffff0000, v{u0}\nv_fmac_f32 v{R + 4 * b + 2}, s{sD}, v165")
                p.e(f"v_lshlrev_b32 v165, 16, v{u0}\nv_fmac_f32 v{R + 4 * b + 3}, s{sD}, v165")
                p.e(f"v_cvt_pk_bf16_f32 v{R + 4 * b}, v{R + 4 * b}, v{R + 4 * b + 1}\nv_cvt_pk_bf16_f32 v{R + 4 * b + 1}, v{R + 4 * b + 2}, v{R + 4 * b + 3}")
                p.e(f"ds_write_b64 v164, {vr(R + 4 * b, 2)} offset:{b * 16}")
            yield ab

        def a2():
            p.e(f"v_lshrrev_b32 v164, 2, v0\nv_lshl_add_u32 v164, v164, 4, v{hW}\nv_add_u32 v164, s82, v164")
            p.e(f"ds_read_b128 {vr(R, 4)}, v164\nds_read_b128 {vr(R + 4, 4)}, v164 offset:1280")
        yield a2

        def a3():
            p.e(f"s_lshl_b32 s6, s72, 12\ns_lshl_b32 s7, s71, 11\ns_add_u32 s6, s6, s7\ns_add_u32 s6, s6, {YT}")
            p.e(f"buffer_store_dwordx4 {vr(R, 4)}, v{hW}, {WS}, s6 offen sc1")
            ytok[0] = p.e(f"buffer_store_dwordx4 {vr(R + 4, 4)}, v{hW}, {WS}, s6 offen offset:1024 sc1")
        yield a3

    def checked(name, load, regs):
        for i, r in enumerate(regs):
            if i == 0:
                p.e(f"v_cmp_ne_u32 vcc, s{sEP}, v{r}")
            else:
                p.e(f"v_cmp_ne_u32 s[6:7], s{sEP}, v{r}\ns_or_b64 vcc, vcc, s[6:7]")
        p.e(f"s_cbranch_vccnz L_{name}_slow")
        p.label(f"L_{name}_back")
        slow.label(f"L_{name}_slow")
        poll(slow, name, load, regs, 78)
        slow.e(f"s_branch L_{name}_back")

    det = [16]
    cur = [0]

    def sync(name):
        p.waitall(vm=False)
        d = OPT["stamps"] and OPT.get("detail", 0) == cur[0]
        if d:
            stamp(p, det[0]); det[0] += 1
        p.bar(name)
        if d:
            stamp(p, det[0]); det[0] += 1

    def h_copies():
        r = SACC
        for ce in range(2):
            def dma(ce=ce):
                p.e(f"s_add_u32 m0, s73, {ce * CS + 64}\ns_lshl_b32 s6, s71, 2\ns_add_u32 s6, s6, {2 * ce}")
                for i in range(4):
                    p.e(f"buffer_load_dwordx4 v{hW}, s[52:55], s6 offen offset:{i * 1024} lds")
            yield dma

        def head():
            p.e(f"v_lshrrev_b32 v{r}, 5, v0\nv_lshrrev_b32 v{r + 1}, 3, v{hLR}\nv_lshl_add_u32 v{r + 2}, v{r}, 1, v{r + 1}")
            p.e(f"s_lshl_b32 s6, s71, 2\ns_sub_u32 s6, s6, 64\nv_add_u32 v{r + 2}, s6, v{r + 2}")
            p.e(f"buffer_load_ushort v{r + 2}, v{r + 2}, s[52:55], 0 offen")
            p.e(f"v_mul_u32_u24 v{r + 3}, {CS}, v{r}\nv_add3_u32 v{r + 3}, v{r + 3}, v{r + 1}, s73")
            p.e(f"v_mul_u32_u24 v{r}, 1536, v{r}\nv_add3_u32 v{r}, v{r}, v{hLR}, s74")
            p.e(f"ds_read_b128 {vr(r + 4, 4)}, v{hZ}")
            p.e(f"ds_write_b128 v{r}, {vr(r + 4, 4)} offset:1024")
        yield head

    SS = [0, 6, 11, 17, 22, 28, 32]

    def ssm_at(L, k):
        return ssm(SS[k], SS[k + 1] - SS[k]) if L == 0 and 0 <= k < 6 else []

    for L in range(2):
        cur[0] = L
        merge(qproj(0), [])
        p.e(f"v_mov_b32 v{t}, {L + 1}\nv_mov_b32 v{t + 1}, s{sH}\nv_lshlrev_b32 v{t + 1}, 2, v{t + 1}")
        p.e(f"ds_write_b32 v{t + 1}, v{t} offset:{QRDY}")
        stamp(p, 4 + 8 * L)
        if L == 1:
            p.bar("PUB")
        else:
            poll(p, "h_fw", f"buffer_load_dword v164, v166, {WS}, s77 offen sc1", [164], 78)
            st.limit = 16
            st.free = sacc_slots[:2] + st.free
            st.pump()
        if OPT["stamps"] and OPT.get("detail", 0) == L:
            stamp(p, det[0]); stamp(p, det[0] + 1); det[0] += 2
        merge(qproj(1), [])
        if L == 0:
            if PREP == 3:
                p.waitall(vm=False)
                prep_loads(p, prep_regs(48), sH)
            oload = f"buffer_load_dword v165, v166, {WS}, s83 offen sc1"
            p.e(oload)
            st.limit = 24
            st.pump()
        sync("X0")
        if L == 0:
            if PREP == 3:
                prep_compute(p, prep_regs(48), 75)
            stok = prep_store(p, prep_regs(48), sH, 75)
            checked("h_fo", oload, [165])
            st.limit = len(frags)
        sync("Y1")
        for j in range(1, 8):
            reduce()
            if L == 0 and j == 2:
                checked("h_fu", uload, [164])
                p.e(f"v_lshlrev_b32 v165, 6, v0\ns_lshl_b32 s6, s72, 12\ns_lshl_b32 s7, s71, 5\ns_add_u32 s6, s6, s7\ns_add_u32 s6, s6, {UR}\ns_add_u32 s7, s6, 16")
                p.e("s_mov_b32 m0, s74")
                p.e(f"buffer_load_dwordx4 v165, {WS}, s6 offen sc1 lds")
                p.e("s_add_u32 m0, s74, 1536")
                utok = p.e(f"buffer_load_dwordx4 v165, {WS}, s7 offen sc1 lds")
                p.e(f"ds_write_b16 v{SACC + 3}, v{SACC + 2}")
            side = ssm_at(L, 2 * j - 5)
            if L == 0 and j == 1:
                def utag():
                    p.wait(stok)
                    p.e(f"s_lshr_b32 s6, s{sO}, 5\ns_lshl_b32 s6, s6, 2\ns_add_u32 s6, s6, s{sH}\ns_lshl_b32 s6, s6, 5\ns_and_b32 s7, s{sO}, 31\ns_add_u32 s6, s6, s7\ns_lshl_b32 s6, s6, 5\ns_add_u32 s6, s6, {FLAGU}")
                    flag_store(p, SACC + 12, hW, "s6")
                side = [lambda: None, utag]
            if L == 0 and j == 6:
                def ytag():
                    p.wait(ytok[0])
                    p.e("s_and_b32 s6, s72, 7\ns_lshl_b32 s6, s6, 11\ns_lshr_b32 s7, s72, 3\ns_lshl_b32 s7, s7, 5\ns_add_u32 s6, s6, s7")
                    p.e(f"s_lshl_b32 s7, s71, 14\ns_add_u32 s6, s6, s7\ns_add_u32 s6, s6, {FLAG2}")
                    flag_store(p, HT + 4, hW, "s6")
                side = [ytag]
            merge(qproj(j + 1) if j < 7 else [], side)
            if L == 0 and j == 2:
                p.wait(utok)
            if L == 0 and j == 5:
                ssm_send()
            if L == 0 and j == 7:
                p.e(f"s_lshr_b32 s6, s{sO}, 7\ns_lshl_b32 s6, s6, 14\ns_lshl_b32 s7, s{sH}, 12\ns_add_u32 s6, s6, s7\ns_add_u32 s79, s6, {FLAG2}")
                yload = f"buffer_load_dword v164, v166, {WS}, s79 offen sc1\nbuffer_load_dword v165, v166, {WS}, s79 offen offset:2048 sc1"
                p.e(yload)
                checked("h_fy", yload, [164, 165])
                p.e(f"v_lshlrev_b32 v166, 15, v0\ns_lshl_b32 s6, s{sH}, 13\ns_lshl_b32 s7, s{sO}, 4\ns_add_u32 s6, s6, s7\ns_add_u32 s6, s6, {YT}\ns_add_u32 s7, s6, 4096")
                p.e(f"s_lshl_b32 s80, s{sH}, 11\ns_add_u32 m0, s80, {YB}")
                p.e(f"buffer_load_dwordx4 v166, {WS}, s6 offen sc1 lds")
                p.e(f"s_add_u32 m0, s80, {YB + 1024}")
                gtok = p.e(f"buffer_load_dwordx4 v166, {WS}, s7 offen sc1 lds")
            sync(f"X{j}")
            side = ssm_at(L, 2 * j - 4)
            if L == 0 and j == 1:
                side = h_copies()
            if L == 0 and j == 5:
                side = ssm_finish()
            merge(oproj(), side)
            if L == 0 and j == 1:
                uload = f"buffer_load_dword v164, v167, {WS}, s79 offen sc1"
                p.e(uload)
            if L == 0 and j == 5:
                st.retired = set()
                st.free += sacc_slots
                st.pump()
            if j == 7:
                p.e(f"v_lshrrev_b32 v{t}, 4, v0\nv_mul_u32_u24 v{t}, {2 * RS}, v{t}\nv_and_b32 v{t + 1}, 15, v0\nv_lshl_add_u32 v{t}, v{t + 1}, 5, v{t}")
                p.e(f"s_lshl_b32 s6, s{sH}, 9\ns_add_u32 s6, s6, {PB}\nv_add_u32 v{t}, s6, v{t}")
            sync(f"Y{j + 1}")
        reduce()
        if L == 0:
            p.wait(gtok)
        sync("X8")
        merge(oproj(pump=False), [])
        for ct in range(8):
            p.e(f"v_add_f32 v{HT + ct}, v{OACC + 4 * ct}, v{OACC + 4 * ct + 1}\nv_add_f32 v{HT + 8 + ct}, v{OACC + 4 * ct + 2}, v{OACC + 4 * ct + 3}")
            if ct == 3:
                p.e(f"ds_write_b128 v{t}, {vr(HT, 4)}\nds_write_b128 v{t}, {vr(HT + 8, 4)} offset:{RS}")
        p.e(f"ds_write_b128 v{t}, {vr(HT + 4, 4)} offset:16\nds_write_b128 v{t}, {vr(HT + 12, 4)} offset:{RS + 16}")
        sync("OUT")
        if L == 0:
            st.pump()
            for i in range(16):
                p.e(f"v_mov_b64 {vr(OACC + 2 * i, 2)}, 0")
            p.bar("XN")
    stamp_flush(p)
    p.e("s_endpgm")
    p.ins += slow.ins
    return p


def main():
    ref = open(f"cdna_kernels/{NAME}.s.ref").read()
    head = [l for l in ref.split("\n") if l.startswith(";") and "@launch" not in l]
    pro, att, hel = prologue(), attention_wave(), helper_wave()
    assert att.bars + att.bars == hel.bars, (att.bars, hel.bars)
    out = "\n".join(head) + f"\n; @launch grid=(256,1,1) block=(768,1,1) lds={LDS_SIZE}\n"
    out += f""".amdgcn_target "amdgcn-amd-amdhsa--gfx950"
.text
.globl {NAME}_kernel
.p2align 8
.type {NAME}_kernel,@function
{NAME}_kernel:
"""
    out += pro.text() + att.text() + hel.text() + "L_exit:\n    s_endpgm\n"
    out += f""".section .rodata,"a"
.p2align 6
.amdhsa_kernel {NAME}_kernel
  .amdhsa_next_free_vgpr 168
  .amdhsa_next_free_sgpr 96
  .amdhsa_accum_offset 168
  .amdhsa_group_segment_fixed_size 0
  .amdhsa_kernarg_size 112
  .amdhsa_user_sgpr_count 2
  .amdhsa_user_sgpr_kernarg_segment_ptr 1
  .amdhsa_system_sgpr_workgroup_id_x 1
.end_amdhsa_kernel
"""
    open(sys.argv[1], "w").write(out)
    print("nops added:", pro.nops_added, att.nops_added, hel.nops_added, "instr:", len(att.ins), len(hel.ins))


main()
```

```python
import sys, os
sys.path.insert(0, os.path.dirname(os.path.abspath(__file__)))
from asmlib import Prog

NAME = "interleave_layers__grouped_kv_mqa__ssm_conv_h3__prompt"
OPT = dict(stamps=0)
for a in sys.argv[2:]:
    k, v = a.split("=")
    OPT[k] = int(v)

EPOCH = 0
FLAGC = 0x8000
FLAGQ = 0x4000
FLAGO = 0x6000
FLAGU = 0x50000
FLAG2 = 0x58000
KV1 = 0x10000
KV2 = 0x30000
WQS = 0x100000
WOS = 0x180000
UR = 0x200000
YT = 0x400000
STAMP = 0x600000
WS_SIZE = 0x700000
ZP = 0
QRDY = 0x40
KVST = 0x100
QF = 0x400
OA = 0x2400
LP = 0x2800
XN = 0x2C00
YB = 0x4C00
PB = 0x6C00
RS = 2080
WKV = 0xAE00
SX = 0x13000
UB = 0x17000
HB = 0x1A000
CS = 4160
WQN = UB
LDS_SIZE = 0x27000
SPIN = 20000
SCALE = 0x3EB8AA3B

sW, sO, sEP = 3, 4, 5
pX, pWQ, pWK, pWV, pWO, pBK, pBV, pSH, pSK, pSD, pOUT, pDBG, pWS = 8, 10, 12, 14, 16, 20, 22, 24, 26, 28, 30, 32, 34
WS = "s[36:39]"
SA, SB, SC = "s[40:43]", "s[44:47]", "s[48:51]"


def vr(a, n=1):
    return f"v{a}" if n == 1 else f"v[{a}:{a + n - 1}]"


def srd(p, base, ptr, size):
    p.e(f"s_mov_b32 s{base}, s{ptr}\ns_mov_b32 s{base + 1}, s{ptr + 1}\ns_mov_b32 s{base + 2}, {size}\ns_mov_b32 s{base + 3}, 0x20000")


_st = [0]


def stamp(p, idx):
    if "echo" in OPT and p.name == "attn" and OPT["echo"] % 8 == idx and 0 <= OPT["echo"] < 100:
        p.waitall(vm=False)
        p.e("s_memrealtime s[92:93]")
        p.waitall(vm=False)
        p.e(f"s_cmp_eq_u32 s56, {OPT['echo'] // 8}\ns_cselect_b32 s94, s92, s94")
    if not OPT["stamps"]:
        return
    p.waitall(vm=False)
    p.e("s_memrealtime s[92:93]")
    p.waitall(vm=False)
    p.e(f"v_writelane_b32 {p.stampreg}, s92, {idx}")


def stamp_flush(p):
    if not OPT["stamps"]:
        return
    p.e(f"s_mul_i32 s92, s{sO}, 12\ns_add_u32 s92, s92, s{sW}\ns_lshl_b32 s92, s92, 8\ns_add_u32 s92, s92, {STAMP}")
    p.e("v_lshlrev_b32 v1, 2, v0")
    p.e(f"buffer_store_dword {p.stampreg}, v1, {WS}, s92 offen")


def poll(p, name, load, regs, tmp_s):
    p.e(f"s_mov_b32 s{tmp_s}, {SPIN}")
    p.label(f"L_{name}")
    p.e(load)
    p.waitall(lg=False)
    for i, r in enumerate(regs):
        if i == 0:
            p.e(f"v_cmp_ne_u32 vcc, s{sEP}, v{r}")
        else:
            p.e(f"v_cmp_ne_u32 s[6:7], s{sEP}, v{r}\ns_or_b64 vcc, vcc, s[6:7]")
    p.e(f"s_cbranch_vccz L_{name}_ok")
    p.e(f"s_sleep 8\ns_sub_u32 s{tmp_s}, s{tmp_s}, 1\ns_cmp_lg_u32 s{tmp_s}, 0\ns_cbranch_scc1 L_{name}")
    p.label(f"L_{name}_ok")


def flag_store(p, t4, va, so, lanes=3):
    for i in range(4):
        p.e(f"v_mov_b32 v{t4 + i}, s{sEP}")
    p.e(f"s_mov_b64 exec, {lanes}")
    p.e(f"buffer_store_dwordx4 {vr(t4, 4)}, v{va}, {WS}, {so} offen sc1")
    p.e("s_mov_b64 exec, -1")


def prologue():
    p = Prog("pro")
    p.e("s_cmp_ge_u32 s2, 256\ns_cbranch_scc1 L_exit")
    if OPT["stamps"] or "echo" in OPT:
        p.e("s_memrealtime s[90:91]")
    p.e("s_setprio 3")
    p.e("s_load_dwordx16 s[8:23], s[0:1], 0\ns_load_dwordx8 s[24:31], s[0:1], 64\ns_load_dwordx4 s[32:35], s[0:1], 96")
    p.e("v_lshrrev_b32 v1, 6, v0\nv_and_b32 v0, 63, v0")
    p.e(f"v_readfirstlane_b32 s{sW}, v1")
    p.e(f"s_and_b32 s6, s2, 7\ns_lshl_b32 s6, s6, 5\ns_lshr_b32 s7, s2, 3\ns_add_u32 s{sO}, s6, s7")
    p.waitall(vm=False)
    p.e(f"s_load_dword s{sEP}, s[{pWS}:{pWS + 1}], {EPOCH}")
    if OPT.get("cpf", 1):
        p.e(f"s_getpc_b64 s[84:85]\ns_mul_i32 s6, s7, 12\ns_add_u32 s6, s6, s{sW}\ns_lshl_b32 s6, s6, 7\ns_min_u32 s6, s6, L_exit-{NAME}_kernel-256")
        p.e("s_load_dword s86, s[84:85], s6\ns_add_u32 s6, s6, 64\ns_load_dword s87, s[84:85], s6")
    srd(p, 36, pWS, WS_SIZE)
    p.e(f"s_cmp_ge_u32 s{sW}, 8\ns_cbranch_scc1 L_helper")
    return p


aL, aZ, aQ, aP, IDX = 1, 2, 4, 5, 6
X, Q, T, O, S, K, V = 8, 16, 20, 24, 40, 72, 104
aK, aV = T + 1, T + 2
sLAY, sKV0, sPUB, sSC, sRET = 56, 64, 58, 59, 57
MLO, MHI = "s[60:61]", "s[62:63]"


def layernorm(p, x, t):
    s, q = t, t + 1
    p.e(f"v_add_f32 v{s}, v{x}, v{x + 1}\nv_mul_f32 v{q}, v{x}, v{x}")
    p.e(f"v_fmac_f32 v{q}, v{x + 1}, v{x + 1}")
    for i in range(2, 8):
        p.e(f"v_add_f32 v{s}, v{s}, v{x + i}\nv_fmac_f32 v{q}, v{x + i}, v{x + i}")
    for m in ("quad_perm:[1,0,3,2] row_mask:0xf", "quad_perm:[2,3,0,1] row_mask:0xf", "row_half_mirror row_mask:0xf",
              "row_mirror row_mask:0xf", "row_bcast:15 row_mask:0xa", "row_bcast:31 row_mask:0xc"):
        p.e(f"v_add_f32_dpp v{s}, v{s}, v{s} {m} bank_mask:0xf")
        p.e(f"v_add_f32_dpp v{q}, v{q}, v{q} {m} bank_mask:0xf")
    p.e(f"v_mul_f32 v{s}, 0x3b000000, v{s}\nv_mul_f32 v{q}, 0x3b000000, v{q}")
    p.e(f"v_fma_f32 v{q}, -v{s}, v{s}, v{q}\nv_max_f32 v{q}, 0, v{q}\nv_add_f32 v{q}, 0x3727c5ac, v{q}")
    p.e(f"v_rsq_f32 v{q}, v{q}")
    p.e(f"v_mul_f32_e64 v{s}, -v{s}, v{q}")
    p.e(f"v_readlane_b32 s68, v{q}, 63\nv_readlane_b32 s69, v{s}, 63")
    p.e(f"v_mov_b32 v{s}, s69")


def wkv_reads(p):
    t = T
    p.e(f"v_lshrrev_b32 v{t}, 5, v0\nv_lshlrev_b32 v{t}, 4, v{t}")
    p.e(f"v_bfe_u32 v{t + 1}, v0, 4, 1\nv_lshl_add_u32 v{t}, v{t + 1}, 2, v{t}")
    p.e(f"v_bfe_u32 v{t + 1}, v0, 3, 1\nv_lshl_add_u32 v{t}, v{t + 1}, 3, v{t}")
    p.e(f"v_bfe_u32 v{t + 1}, v0, 2, 1\nv_add_u32 v{t}, v{t}, v{t + 1}")
    p.e(f"v_and_b32 v{t + 1}, 3, v0\nv_lshlrev_b32 v{t + 1}, 3, v{t + 1}\nv_lshl_add_u32 v{t}, v{t}, 5, v{t + 1}")
    p.e(f"s_lshl_b32 s6, s{sW}, 14\ns_add_u32 s6, s6, {WKV}\nv_add_u32 v{t}, s6, v{t}")
    for kb in range(8):
        for a in range(4):
            off = (64 * kb + 32 * (a >> 1) + 2 * (a & 1)) * 32
            p.e(f"ds_read_b64_tr_b16 {vr(S + 8 * kb + 2 * a, 2)}, v{t} offset:{off}")


def kv_loads(p, kt):
    so = f"s{sKV0 + (kt >> 1)}"
    im = (kt & 1) * 2048
    p.e(f"buffer_load_dwordx4 {vr(K + 4 * kt, 4)}, v{aK}, {WS}, {so} offen offset:{im} sc1")
    p.e(f"buffer_load_dwordx4 {vr(V + 8 * kt, 4)}, v{aV}, {WS}, {so} offen offset:{im} sc1")


def w_gather(p):
    p.e("v_and_b32 v57, 15, v0\nv_lshrrev_b32 v58, 4, v0")
    p.e(f"s_bfe_u32 s6, s{sO}, 0x20003\ns_lshr_b32 s7, s{sO}, 5\ns_and_b32 s78, s{sO}, 7")
    p.e(f"s_lshl_b32 s79, s6, 6\ns_lshl_b32 s72, s7, 3\ns_add_u32 s79, s79, s72\ns_add_u32 s79, s79, s78\ns_lshl_b32 s79, s79, 5")
    p.e(f"s_cmp_eq_u32 s{sW}, 3\ns_cbranch_scc1 L_a_wo")
    srd(p, 44, pWQ, 0x80000)
    p.e("v_lshrrev_b32 v59, 5, v0\nv_lshlrev_b32 v56, 14, v59\nv_and_b32 v59, 1, v58\nv_lshl_add_u32 v56, v59, 12, v56\nv_lshl_add_u32 v56, v57, 1, v56")
    p.e(f"s_lshl_b32 s72, s78, 16\ns_lshr_b32 s6, s{sO}, 3\ns_lshl_b32 s6, s6, 5\ns_add_u32 s72, s72, s6")
    p.e("s_add_u32 s73, s72, 8192\ns_add_u32 s74, s72, 32768\ns_add_u32 s75, s72, 40960")
    p.e(f"v_mov_b32 v103, v{aQ}\ns_lshl_b32 s76, s{sO}, 11\ns_add_u32 s76, s76, {WQS}\ns_add_u32 s77, s76, 1024\ns_add_u32 s79, s79, {FLAGQ}")
    p.e("s_branch L_a_wg")
    p.label("L_a_wo")
    srd(p, 44, pWO, 0x80000)
    p.e("v_lshlrev_b32 v57, 4, v57\nv_lshl_add_u32 v103, v58, 11, v57\nv_lshl_add_u32 v56, v58, 1, v57")
    p.e("s_lshl_b32 s72, s7, 16\ns_lshl_b32 s73, s78, 13\ns_add_u32 s72, s72, s73\ns_lshl_b32 s73, s6, 8\ns_add_u32 s72, s72, s73")
    p.e("s_add_u32 s73, s72, 4096\ns_add_u32 s74, s72, 8\ns_add_u32 s75, s72, 4104")
    p.e("s_lshl_b32 s76, s7, 16\ns_lshl_b32 s6, s6, 14\ns_add_u32 s76, s76, s6\ns_lshl_b32 s6, s78, 8\ns_add_u32 s76, s76, s6")
    p.e(f"s_add_u32 s76, s76, {WOS}\ns_add_u32 s77, s76, 8192\ns_add_u32 s79, s79, {FLAGO}")
    p.label("L_a_wg")
    for hf in range(2):
        for j in range(4):
            for e in range(2):
                p.e(f"buffer_load_ushort v{40 + 8 * hf + 2 * j + e}, v56, {SB}, s{72 + 2 * hf + (j & 1)} offen offset:{(2 * (j >> 1) + e) * 1024}")


def prep_regs(base):
    return dict(KR=base, VR=base + 11, SH=base + 20, PW=base + 24, KU=base + 29, PU=base + 40, PO=base + 48, PA=base + 56)


def prep_loads(p, R, hw):
    KR, VR, SH, PA = R["KR"], R["VR"], R["SH"], R["PA"]
    srd(p, 44, pBK, 0x200000)
    srd(p, 48, pBV, 0x200000)
    srd(p, 40, pSH, 0x1000)
    p.e(f"v_lshrrev_b32 v{PA}, 3, v0\nv_and_b32 v{PA + 1}, 7, v0")
    p.e(f"v_lshlrev_b32 v{PA + 2}, 13, v{PA}\nv_lshl_add_u32 v{PA + 2}, v{PA + 1}, 2, v{PA + 2}")
    p.e(f"s_and_b32 s6, s{sO}, 31\ns_lshr_b32 s62, s{sO}, 5")
    p.e(f"s_lshl_b32 s6, s6, 16\ns_lshl_b32 s7, s62, 7\ns_add_u32 s6, s6, s7\ns_lshl_b32 s7, s{hw}, 5\ns_add_u32 s60, s6, s7\ns_add_u32 s61, s60, 4096")
    p.e(f"s_sub_u32 s6, s60, 3072\nv_add_u32 v{PA + 3}, s6, v{PA + 2}")
    p.e(f"s_lshl_b32 s6, s62, 9\ns_lshl_b32 s7, s{hw}, 7\ns_add_u32 s6, s6, s7\nv_lshlrev_b32 v{PA + 4}, 4, v{PA + 1}")
    p.e(f"buffer_load_dwordx4 {vr(SH, 4)}, v{PA + 4}, {SA}, s6 offen")
    for r in range(3):
        p.e(f"buffer_load_dword v{KR + r}, v{PA + 3}, {SB}, 0 offen offset:{r * 1024}")
    for r in range(8):
        p.e(f"buffer_load_dword v{KR + 3 + r}, v{PA + 2}, {SB}, s{60 + (r >> 2)} offen offset:{(r & 3) * 1024}")
    for r in range(8):
        p.e(f"buffer_load_dword v{VR + r}, v{PA + 2}, {SC}, s{60 + (r >> 2)} offen offset:{(r & 3) * 1024}")


def prep_compute(p, R, sx):
    KR, VR, SH, PW, KU, PU, PO, PA = (R[k] for k in ("KR", "VR", "SH", "PW", "KU", "PU", "PO", "PA"))
    for c in range(2):
        un = (lambda d, s: f"v_lshlrev_b32 v{d}, 16, v{s}") if c == 0 else (lambda d, s: f"v_and_b32 v{d}, 0xffff0000, v{s}")
        for j in range(2):
            p.e(f"v_lshlrev_b32 v{PW + 2 * j}, 16, v{SH + 2 * c + j}\nv_and_b32 v{PW + 2 * j + 1}, 0xffff0000, v{SH + 2 * c + j}")
        for r in reversed(range(11)):
            p.e(un(KU + r, KR + r))
        for r in reversed(range(8)):
            p.e(f"v_mul_f32 v{PU + r}, v{PW}, v{KU + 3 + r}")
            for j in range(1, 4):
                p.e(f"v_fmac_f32 v{PU + r}, v{PW + j}, v{KU + 3 + r - j}")
            p.e(un(PW + 4, VR + r))
            p.e(f"v_mul_f32 v{PU + r}, v{PU + r}, v{PW + 4}")
        for i in range(4):
            p.e(f"v_cvt_pk_bf16_f32 v{PO + 4 * c + i}, v{PU + 7 - 2 * i}, v{PU + 6 - 2 * i}")
    a2 = PA + 2
    p.e(f"v_xor_b32 v{a2}, 7, v{PA}\nv_xor_b32 v{a2}, v{a2}, v{PA + 1}\nv_lshlrev_b32 v{a2}, 4, v{a2}\nv_lshl_add_u32 v{a2}, v{PA + 1}, 8, v{a2}\nv_add_u32 v{a2}, s{sx}, v{a2}")
    p.e(f"ds_write_b128 v{a2}, {vr(PO, 4)}\nds_write_b128 v{a2}, {vr(PO + 4, 4)} offset:128")


def prep_store(p, R, hw, sx):
    PO, PA = R["PO"], R["PA"]
    a2, a3, a4 = PA + 2, PA + 3, PA + 4
    p.e(f"v_lshrrev_b32 v{PA}, 3, v0\nv_and_b32 v{PA + 1}, 7, v0")
    p.e(f"v_lshrrev_b32 v{a3}, 4, v0\nv_xor_b32 v{a3}, v{a3}, v{PA + 1}\nv_lshlrev_b32 v{a3}, 4, v{a3}\nv_lshl_add_u32 v{a3}, v{PA}, 7, v{a3}\nv_add_u32 v{a3}, s{sx}, v{a3}")
    p.e(f"v_xor_b32 v{a4}, 64, v{a3}")
    p.e(f"ds_read_b128 {vr(PO, 4)}, v{a3}\nds_read_b128 {vr(PO + 4, 4)}, v{a4} offset:1024")
    p.e(f"v_lshlrev_b32 v{a2}, 12, v{PA}\nv_lshl_add_u32 v{a2}, v{PA + 1}, 4, v{a2}")
    p.e(f"s_lshr_b32 s6, s{sO}, 5\ns_lshl_b32 s6, s6, 18\ns_lshl_b32 s7, s{hw}, 16\ns_add_u32 s6, s6, s7\ns_and_b32 s7, s{sO}, 31\ns_lshl_b32 s7, s7, 7")
    p.e(f"s_sub_u32 s6, s6, s7\ns_add_u32 s6, s6, {UR + 3968}\ns_add_u32 s7, s6, 0x8000")
    p.e(f"buffer_store_dwordx4 {vr(PO, 4)}, v{a2}, {WS}, s6 offen sc1")
    return p.e(f"buffer_store_dwordx4 {vr(PO + 4, 4)}, v{a2}, {WS}, s7 offen sc1")


PREP = OPT.get("prep", 1)


def attention_wave():
    p = Prog("attn")
    p.stampreg = "v23"
    retry = Prog("retry")
    if OPT.get("echo", -1) >= 100:
        bar0 = p.bar

        def bar(name):
            bar0(name)
            if len(p.bars) - 1 == OPT["echo"] % 100:
                print("echo at", name)
                p.waitall(vm=False)
                p.e("s_memrealtime s[92:93]")
                p.waitall(vm=False)
                p.e(f"s_cmp_eq_u32 s56, {OPT['echo'] // 100 - 1}\ns_cselect_b32 s94, s92, s94")
        p.bar = bar
    t = T
    srd(p, 40, pX, 0x200000)
    p.e(f"v_lshlrev_b32 v{aQ}, 4, v0\nv_mov_b32 v103, 0")
    p.e(f"s_lshl_b32 s6, s{sO}, 3\ns_add_u32 s6, s6, s{sW}\ns_lshl_b32 s70, s6, 10")
    p.e(f"buffer_load_dwordx4 {vr(Q, 4)}, v{aQ}, {SA}, s70 offen")
    p.e("s_setprio 1")
    p.e(f"s_cmp_ge_u32 s{sW}, 4\ns_cbranch_scc1 L_a_nodma")
    p.e(f"s_cmp_ge_u32 s{sW}, 2\ns_cbranch_scc1 L_a_wq")
    p.e(f"s_cmp_eq_u32 s{sW}, 0")
    p.e(f"s_cselect_b32 s44, s{pWK}, s{pWV}\ns_cselect_b32 s45, s{pWK + 1}, s{pWV + 1}\ns_mov_b32 s46, 0x4000\ns_mov_b32 s47, 0x20000")
    p.e(f"s_lshl_b32 s6, s{sW}, 14\ns_add_u32 s6, s6, {WKV}")
    p.e(f"s_lshl_b32 s7, s{sO}, 10")
    for i in range(16):
        p.e("s_and_b32 s7, s7, 0x3c00\ns_add_u32 m0, s6, s7")
        p.e(f"buffer_load_dwordx4 v{aQ}, {SB}, s7 offen lds")
        p.e("s_add_u32 s7, s7, 1024")
    p.e("s_branch L_a_nodma")
    p.label("L_a_wq")
    w_gather(p)
    p.label("L_a_nodma")
    p.e(f"s_lshl_b32 s6, s{sO}, 9\ns_lshl_b32 s7, s{sW}, 8\ns_add_u32 s{sPUB}, s6, s7\ns_add_u32 s{sPUB}, s{sPUB}, {KV1}")
    p.e(f"s_cmp_eq_u32 s{sW}, 0\ns_cselect_b32 s{sSC}, {SCALE}, 1.0")
    p.e(f"v_and_b32 v{t + 1}, 31, v0\nv_lshlrev_b32 v{t + 2}, 4, v{t + 1}")
    p.e(f"v_mov_b32 v{IDX}, 0xdddd\nv_mov_b32 v{aZ}, 0\nv_mov_b32 v{aZ + 1}, 0")
    p.e(f"s_lshl_b32 s6, s{sW}, 11\ns_add_u32 s6, s6, {PB}\nv_add_u32 v{aP}, s6, v{aQ}")
    p.e(f"s_lshr_b32 s6, s{sW}, 2\ns_lshl_b32 s6, s6, 9\ns_and_b32 s7, s{sW}, 3\ns_lshl_b32 s7, s7, 2\ns_add_u32 s6, s6, s7\ns_add_u32 s6, s6, {LP}")
    p.e(f"v_add_u32 v{aL}, s6, v{t + 2}")
    p.e(f"s_sub_u32 s71, s{sW}, 4\ns_lshl_b32 s80, s71, 12\ns_add_u32 s80, s80, {SX}")
    p.e(f"s_mov_b32 s{sLAY}, 0\ns_lshl_b32 s6, s{sW}, 14\ns_add_u32 s{sKV0}, s6, {KV1}")
    if OPT["stamps"]:
        p.e("v_mov_b32 v23, 0\nv_writelane_b32 v23, s90, 0")
    if "echo" in OPT:
        p.e("s_mov_b32 s94, s90")
    p.waitall()
    p.e(f"s_add_u32 s{sEP}, s{sEP}, 0x9e3779b1")
    stamp(p, 1)
    p.e(f"ds_write_b64 v{aZ}, {vr(aZ, 2)}\nds_write_b64 v{aZ}, {vr(aZ, 2)} offset:8")
    p.e(f"ds_write_b64 v{aZ}, {vr(aZ, 2)} offset:{QRDY}\nds_write_b64 v{aZ}, {vr(aZ, 2)} offset:{QRDY + 8}")
    p.e(f"s_cmp_ge_u32 s{sW}, 4\ns_cbranch_scc1 L_a_r4")
    p.e(f"s_cmp_ge_u32 s{sW}, 2\ns_cbranch_scc1 L_a_r2")
    wkv_reads(p)
    p.e("s_branch L_a_r")
    p.label("L_a_r2")
    for hf in range(2):
        for j in range(4):
            p.e(f"v_lshl_or_b32 v{60 + 4 * hf + j}, v{41 + 8 * hf + 2 * j}, 16, v{40 + 8 * hf + 2 * j}")
        p.e(f"buffer_store_dwordx4 {vr(60 + 4 * hf, 4)}, v103, {WS}, s{76 + hf} offen sc1")
    p.e("s_branch L_a_r")
    p.label("L_a_r4")
    if PREP == 0:
        prep_loads(p, prep_regs(40), 71)
    p.label("L_a_r")
    p.q["vm"] = []
    p.pend = {}
    for i in range(4):
        p.e(f"v_lshlrev_b32 v{X + 2 * i}, 16, v{Q + i}\nv_and_b32 v{X + 2 * i + 1}, 0xffff0000, v{Q + i}")
    p.label("L_a_layer")
    layernorm(p, X, T)
    for i in range(8):
        p.e(f"v_fma_f32 v{O + i}, v{X + i}, s68, v{T}")
    for i in range(4):
        p.e(f"v_cvt_pk_bf16_f32 v{Q + i}, v{O + 2 * i}, v{O + 2 * i + 1}")
    p.e(f"v_bfe_u32 v{t}, v0, 1, 2\nv_xor_b32 v{t + 1}, s{sW}, v{t}\nv_lshlrev_b32 v{t + 1}, 5, v{t + 1}")
    p.e(f"v_lshl_add_u32 v{t + 1}, v{t}, 8, v{t + 1}\nv_and_b32 v{t}, 1, v0\nv_lshl_add_u32 v{t + 1}, v{t}, 4, v{t + 1}")
    p.e(f"v_lshrrev_b32 v{t}, 3, v0\nv_lshl_add_u32 v{t + 1}, v{t}, 10, v{t + 1}")
    p.e(f"ds_write_b128 v{t + 1}, {vr(Q, 4)} offset:{XN}")
    p.waitall(vm=False)
    p.bar("XN")
    stamp(p, 2)
    p.e(f"s_cmp_ge_u32 s{sW}, 2\ns_cbranch_scc1 L_a_nokv")
    p.begin_if("kv")
    p.e(f"v_lshrrev_b32 v{t}, 4, v0\nv_lshlrev_b32 v{t + 1}, 5, v{t}\nv_xor_b32 v{t + 1}, v{t + 1}, v{aQ}")
    for kb in range(8):
        p.e(f"ds_read_b128 {vr(V + 4 * kb, 4)}, v{t + 1} offset:{XN + kb * 1024}")
    p.e(f"v_and_b32 v{t + 2}, 1, v0\nv_mul_u32_u24 v{t + 2}, 0xaaaa, v{t + 2}\nv_add_u32 v{t + 2}, 0x4444, v{t + 2}")
    p.e(f"v_mov_b64 {vr(O, 2)}, 0\nv_mov_b64 {vr(O + 2, 2)}, 0")
    p.e(f"v_bfe_u32 v{O + 4}, v0, 3, 1\nv_lshlrev_b32 v{O + 4}, 7, v{O + 4}\nv_lshl_add_u32 v{O + 4}, v{t}, 5, v{O + 4}")
    p.e(f"v_and_b32 v{O + 5}, 7, v0\nv_lshl_add_u32 v{O + 4}, v{O + 5}, 1, v{O + 4}\nv_add_u32 v{O + 5}, 16, v{O + 4}")
    p.e(f"s_cmp_eq_u32 s{sW}, 0\ns_cbranch_scc1 L_a_isk")
    p.e(f"v_and_b32 v{O + 4}, 15, v0\nv_lshlrev_b32 v{O + 4}, 4, v{O + 4}\nv_lshl_add_u32 v{O + 4}, v{t}, 2, v{O + 4}")
    p.e(f"v_add_u32 v{O + 4}, 256, v{O + 4}\nv_add_u32 v{O + 5}, 2, v{O + 4}")
    p.label("L_a_isk")
    p.e(f"s_lshl_b32 s6, s{sW}, 8\nv_add_u32 v{O + 6}, s6, v{aQ}")
    for kb in range(8):
        p.e(f"v_smfmac_f32_16x16x64_bf16 {vr(O, 4)}, {vr(V + 4 * kb, 4)}, {vr(S + 8 * kb, 8)}, v{t + 2}")
    p.e(f"v_add_f32 v{O}, v{O}, v{O + 1}\nv_add_f32 v{O + 2}, v{O + 2}, v{O + 3}")
    p.e(f"v_mul_f32 v{O}, s{sSC}, v{O}\nv_mul_f32 v{O + 2}, s{sSC}, v{O + 2}")
    p.e(f"v_cvt_pk_bf16_f32 v{O}, v{O}, v{O + 2}")
    p.e(f"ds_write_b16 v{O + 4}, v{O} offset:{KVST}\nds_write_b16_d16_hi v{O + 5}, v{O} offset:{KVST}")
    p.e("s_mov_b64 exec, 0xffff")
    p.e(f"ds_read_b128 {vr(Q, 4)}, v{O + 6} offset:{KVST}")
    p.e(f"buffer_store_dwordx4 {vr(Q, 4)}, v{aQ}, {WS}, s{sPUB} offen sc1")
    p.e("s_mov_b64 exec, -1")
    p.end_if()
    p.label("L_a_nokv")
    stamp(p, 3)

    p.e(f"v_and_b32 v{t}, 11, v0\nv_cmp_eq_u32 vcc, 0, v{t}\nv_mov_b32 v{t}, 0x3f803f80")
    p.e(f"v_cndmask_b32 v{V + 4}, 0, v{t}, vcc")
    p.e(f"v_mov_b32 v{V + 5}, v{V + 4}")
    for i in range(1, 16):
        p.e(f"v_mov_b64 {vr(V + 8 * (i >> 1) + 4 + 2 * (i & 1), 2)}, {vr(V + 4, 2)}")
    for i in range(1, 4):
        p.e(f"s_add_u32 s{sKV0 + i}, s{sKV0}, {i * 4096}")
    p.e(f"s_mov_b32 s{sRET}, {SPIN}")
    p.e(f"v_bfe_u32 v{t}, v0, 3, 2\nv_lshlrev_b32 v{aK}, 9, v{t}")
    p.e(f"v_and_b32 v{t}, 7, v0\nv_lshl_add_u32 v{aK}, v{t}, 4, v{aK}")
    p.e(f"v_and_b32 v{aV}, 15, v0\nv_lshlrev_b32 v{aV}, 4, v{aV}\nv_bfe_u32 v{t}, v0, 4, 1\nv_lshl_add_u32 v{aV}, v{t}, 10, v{aV}\nv_lshrrev_b32 v{t}, 5, v0")
    p.e(f"v_lshl_add_u32 v{aK}, v{t}, 7, v{aK}\nv_lshl_add_u32 v{aV}, v{t}, 9, v{aV}\nv_add_u32 v{aV}, 256, v{aV}")
    if PREP < 3:
        p.e(f"s_lshr_b32 s6, s{sW}, 2\ns_cmp_le_u32 s6, s{sLAY}\ns_cbranch_scc1 L_a_noprep")
        if PREP == 1:
            prep_loads(p, prep_regs(40), 71)
        p.e("s_barrier ; PUB")
        if PREP == 2:
            prep_loads(p, prep_regs(40), 71)
        p.waitall(lg=False)
        prep_compute(p, prep_regs(40), 80)
        p.e("s_branch L_a_ld")
        p.label("L_a_noprep")
    p.waitall()
    p.e(f"s_lshr_b32 s6, s{sW}, 1\ns_lshl_b32 s7, s{sLAY}, 2\ns_add_u32 s6, s6, s7\ns_cmp_lg_u32 s6, 1\ns_cbranch_scc1 L_a_notag")
    flag_store(p, O, aQ, "s79")
    p.label("L_a_notag")
    p.bar("PUB")
    p.q["vm"] = []
    p.label("L_a_ld")
    stamp(p, 4)
    p.e("s_setprio 3")
    for kt in range(8):
        kv_loads(p, kt)
    p.e("s_setprio 0")
    for i in range(8):
        p.e(f"v_mov_b64 {vr(O + 2 * i, 2)}, 0")
    p.waitall(vm=False)
    p.label("L_a_q0")
    p.e(f"ds_read_b128 {vr(Q, 4)}, v{aZ} offset:{QRDY}")
    p.e(f"v_min3_u32 v{Q}, v{Q}, v{Q + 1}, v{Q + 2}\nv_min_u32 v{Q}, v{Q}, v{Q + 3}\nv_cmp_lt_u32 vcc, s{sLAY}, v{Q}")
    p.e("s_cbranch_vccnz L_a_q0ok\ns_sleep 1\ns_branch L_a_q0")
    p.label("L_a_q0ok")
    p.e(f"ds_read_b128 {vr(Q, 4)}, v{aQ} offset:{QF}")

    def check(kt):
        p.e(f"v_max_u32 v{T}, v{K + 4 * kt}, v{V + 8 * kt}")
        p.e(f"v_cmp_eq_u32 vcc, -1, v{T}")
        p.e(f"s_cbranch_vccnz L_a_retry{kt}")
        p.label(f"L_a_back{kt}")
        r = retry
        r.label(f"L_a_retry{kt}")
        r.e(f"s_sub_u32 s{sRET}, s{sRET}, 1\ns_cmp_lt_i32 s{sRET}, 0\ns_cbranch_scc1 L_a_back{kt}")
        r.e(f"s_sleep {OPT.get('d2', 6)}")
        kv_loads(r, kt)
        r.waitall(lg=False)
        r.e(f"v_max_u32 v{T}, v{K + 4 * kt}, v{V + 8 * kt}")
        r.e(f"v_cmp_eq_u32 vcc, -1, v{T}")
        r.e(f"s_cbranch_vccnz L_a_retry{kt}\ns_branch L_a_back{kt}")

    def vswap(kt):
        for i in range(4):
            p.e(f"v_permlane16_swap_b32 v{V + 8 * kt + i}, v{V + 8 * kt + 4 + i}")

    def Sb(i):
        return S + 16 * (i & 1)

    def qk(kt):
        p.e(f"v_mfma_f32_32x32x16_bf16 {vr(Sb(kt), 16)}, {vr(K + 4 * kt, 4)}, {vr(Q, 4)}, 0")

    def pv(kt, s):
        p.e(f"v_smfmac_f32_32x32x32_bf16 {vr(O, 16)}, {vr(V + 8 * kt + 4 * s, 4)}, {vr(Sb(kt) + 8 * s, 8)}, v{IDX}")

    def put_partial():
        p.e(f"ds_write_b128 v{aP}, {vr(O, 4)}\nds_write_b128 v{aP}, {vr(O + 4, 4)} offset:1024\nds_write_b32 v{aL}, v{O + 8}")

    check(0)
    qk(0)
    vswap(0)
    stamp(p, 5)
    for j in range(8):
        for kt in range(8):
            first = j > 0 and kt == 0
            last = j == 7 and kt == 7
            for e in range(16):
                p.e(f"v_exp_f32 v{Sb(kt) + e}, v{Sb(kt) + e}")
                if e == 1 and not (j == 0 and kt == 0): pv((kt - 1) % 8, 1)
                if e == 4 and not last:
                    if j == 0 and kt < 7: check(kt + 1)
                    qk((kt + 1) % 8)
                    if j == 0 and kt < 7: vswap(kt + 1)
                    if kt == 6 and j < 7:
                        p.e(f"ds_read_b128 {vr(Q, 4)}, v{aQ} offset:{QF + (j + 1) * 1024}")
                if e == (12 if first else 9): pv(kt, 0)
                if e == 8 and first:
                    put_partial()
                    p.e(f"v_mfma_f32_32x32x8bf16_1k {vr(O, 16)}, {vr(aZ, 2)}, {vr(aZ, 2)}, 0")
                    p.e("s_setprio 0")
            if j > 0 and kt == 1:
                p.waitall(vm=False)
                p.bar(f"Y{j}")
            if kt == 5:
                p.bar(f"X{j}")
                p.e("s_setprio 1")
    pv(7, 1)
    put_partial()
    p.waitall()
    p.e("s_setprio 0")
    p.bar("Y8")
    stamp(p, 6)
    Yr = O
    p.bar("X8")
    for i in range(4):
        p.e(f"v_mov_b64 {vr(Yr + 2 * i, 2)}, 0")
    p.e(f"s_lshl_b32 s6, s{sW}, 1\nv_add_u32 v{t}, s6, v{aQ}")
    for i in range(8):
        p.e(f"ds_read_u16_d16_hi v{Yr + i}, v{t} offset:{YB + i * 1024}")
    p.e(f"s_mul_i32 s6, s{sW}, {RS}\ns_add_u32 s6, s6, {PB}\nv_lshlrev_b32 v{t + 2}, 5, v0\nv_add_u32 v{t + 2}, s6, v{t + 2}")
    p.e(f"s_lshl_b32 s6, s{sLAY}, 1\ns_add_u32 s6, s6, s{sW}\ns_cmp_ge_u32 s6, 2\ns_cbranch_scc1 L_a_nowkv")
    p.begin_if("wkv1")
    wkv_reads(p)
    p.end_if()
    p.label("L_a_nowkv")
    p.bar("OUT")
    p.e(f"ds_read_b128 {vr(O + 8, 4)}, v{t + 2}\nds_read_b128 {vr(O + 12, 4)}, v{t + 2} offset:16")
    stamp(p, 7)
    for i in range(8):
        p.e(f"v_add_f32 v{X + i}, v{X + i}, v{O + 8 + i}")
    layernorm(p, X, T)
    for i in range(8):
        p.e(f"v_fma_f32 v{O + 8 + i}, v{X + i}, s68, v{T}")
    for i in range(8):
        p.e(f"v_fmac_f32 v{X + i}, v{O + 8 + i}, v{Yr + i}")
    p.e(f"s_cmp_lg_u32 s{sLAY}, 0\ns_cbranch_scc1 L_a_final")
    p.e(f"s_mov_b32 s{sLAY}, 1\ns_add_u32 s{sPUB}, s{sPUB}, {KV2 - KV1}\ns_add_u32 s{sKV0}, s{sKV0}, {KV2 - KV1}")
    if OPT["stamps"]:
        p.e("s_nop 1\nv_mov_b32_dpp v22, v23 row_shr:8 row_mask:0xf bank_mask:0xf\ns_mov_b64 exec, 0xff00\nv_mov_b32 v23, v22\ns_mov_b64 exec, -1")
    p.e("s_branch L_a_layer")
    p.label("L_a_final")
    for i in range(4):
        p.e(f"v_cvt_pk_bf16_f32 v{Q + i}, v{X + 2 * i}, v{X + 2 * i + 1}")
    srd(p, 40, pOUT, 0x200000)
    p.e(f"buffer_store_dwordx4 {vr(Q, 4)}, v{aQ}, {SA}, s70 offen")
    p.e(f"s_or_b32 s6, s{sO}, s{sW}\ns_cmp_lg_u32 s6, 0\ns_cbranch_scc1 L_a_end")
    p.e(f"v_mov_b32 v{t}, s{sEP}\ns_mov_b64 exec, 1")
    p.e(f"buffer_store_dword v{t}, v{aZ}, {WS}, 0 offen")
    p.e("s_mov_b64 exec, -1")
    p.label("L_a_end")
    stamp(p, 0)
    stamp_flush(p)
    if "echo" in OPT:
        p.e("s_add_u32 s94, s94, 7000")
        p.label("L_echo")
        p.e("s_sleep 1\ns_memrealtime s[92:93]")
        p.waitall(vm=False)
        p.e("s_sub_u32 s6, s94, s92\ns_cmp_gt_i32 s6, 0\ns_cbranch_scc1 L_echo")
    p.e("s_endpgm")
    p.ins += retry.ins
    return p


hW, hIDX, hXN, hQW, hPR, hLR, hOW, hMX, hH, hU, hZ = 1, 2, 3, 4, 5, 6, 7, 9, 10, 11, 15
hT0 = 12
OACC, QACC, AF, HT, SACC, RING = 16, 48, 52, 60, 84, 116
sH, sHB, sD, sSO = 56, 57, 58, 59


class Stream:
    def __init__(self, p, frags, slots):
        self.p, self.frags, self.free = p, frags, list(slots)
        self.next_issue = 0
        self.inflight = []
        self.cur_so = None
        self.retired = set()
        self.limit = len(frags)

    def pump(self, maxn=99):
        n = 0
        while self.free and self.next_issue < self.limit and n < maxn:
            off = self.frags[self.next_issue]
            slot = self.free.pop(0)
            base = off & ~4095
            if base != self.cur_so:
                self.p.e(f"s_add_u32 s{sSO}, s{sHB}, {base}")
                self.cur_so = base
            for J in range(2):
                self.p.e(f"buffer_load_dwordx4 {vr(slot + 4 * J, 4)}, v{hW}, {WS}, s{sSO} offen offset:{(off & 4095) + J * 1024} sc1")
            self.inflight.append(slot)
            self.next_issue += 1
            n += 1

    def take(self):
        return self.inflight.pop(0)

    def release(self, slot, pump=True):
        if slot not in self.retired:
            self.free.append(slot)
        if pump:
            self.pump()


def merge(a, b):
    a, b = list(a), list(b)
    i = j = 0
    while i < len(a) or j < len(b):
        if j >= len(b) or (i < len(a) and i * len(b) <= j * len(a)):
            a[i](); i += 1
        else:
            b[j](); j += 1


def helper_wave():
    p = Prog("help")
    p.stampreg = "v8"
    slow = Prog("hslow")
    t = hT0

    def wqn():
        srd(p, 40, pWQ, 0x80000)
        p.e("v_lshlrev_b32 v62, 1, v14\nv_and_b32 v63, 7, v0\nv_xor_b32 v62, v62, v63\nv_lshlrev_b32 v62, 4, v62")
        p.e("v_lshrrev_b32 v63, 3, v0\nv_lshl_add_u32 v62, v63, 10, v62\nv_xor_b32 v63, 64, v62")
        p.e(f"s_lshl_b32 s6, s{sH}, 17\ns_add_u32 s7, s{sHB}, {WQN}")
        p.e(f"s_lshl_b32 s61, s{sO}, 11")
        for i in range(16):
            p.e("s_and_b32 s61, s61, 0x3c00\ns_add_u32 m0, s7, s61\ns_lshl_b32 s60, s61, 3\ns_add_u32 s60, s60, s6")
            p.e(f"buffer_load_dwordx4 v{62 + (i & 1)}, {SA}, s60 offen lds")
            p.e("s_add_u32 s61, s61, 1024")

    p.label("L_helper")
    p.e(f"s_sub_u32 s{sH}, s{sW}, 8\ns_lshl_b32 s{sHB}, s{sH}, 14")
    p.e(f"v_lshlrev_b32 v{hW}, 4, v0\nv_mov_b32 v{hZ}, 0")
    p.e(f"s_lshl_b32 s6, s{sO}, 2\ns_load_dword s{sD}, s[{pSD}:{pSD + 1}], s6")
    p.e(f"v_and_b32 v60, 31, v0\nv_lshlrev_b32 v60, 4, v60\nv_lshrrev_b32 v61, 5, v0\nv_lshl_add_u32 v60, v61, 17, v60")
    p.e(f"v_mov_b64 v[64:65], -1\nv_mov_b64 v[66:67], -1\ns_lshl_b32 s6, s{sO}, 9\ns_add_u32 s6, s6, {KV1}")
    p.e(f"s_cmp_lg_u32 s{sH}, 0\ns_cbranch_scc1 L_h_noclr")
    ctok = p.e(f"buffer_store_dwordx4 v[64:67], v60, {WS}, s6 offen sc1")
    p.label("L_h_noclr")
    p.e("s_setprio 0")
    p.e(f"s_lshr_b32 s70, s{sH}, 1\ns_and_b32 s71, s{sH}, 1\ns_lshl_b32 s6, s{sO}, 1\ns_add_u32 s72, s6, s70")
    p.e(f"s_lshl_b32 s6, s72, 12\ns_add_u32 s52, s{pSK}, s6\ns_addc_u32 s53, s{pSK + 1}, 0\ns_mov_b32 s54, 0x1000\ns_mov_b32 s55, 0x20000")
    p.e(f"s_mul_i32 s73, s{sH}, {2 * CS}\ns_add_u32 s73, s73, {HB}")
    p.e(f"s_mul_i32 s74, s{sH}, 3072\ns_add_u32 s74, s74, {UB}")
    p.e(f"s_lshl_b32 s75, s{sH}, 12\ns_add_u32 s75, s75, {SX}")
    p.e(f"v_and_b32 v30, 31, v0\nv_and_b32 v{t + 1}, 7, v0")
    p.e(f"v_and_b32 v{hIDX}, 1, v0\nv_mul_u32_u24 v{hIDX}, 0xaaaa, v{hIDX}\nv_add_u32 v{hIDX}, 0x4444, v{hIDX}")
    p.e(f"v_lshrrev_b32 v{t}, 4, v0\nv_lshlrev_b32 v{hXN}, 5, v{t}\nv_xor_b32 v{hXN}, v{hXN}, v{hW}")
    p.e(f"v_bfe_u32 v{hQW}, v0, 3, 1\nv_lshlrev_b32 v{hQW}, 9, v{hQW}\nv_lshl_add_u32 v{hQW}, v{t}, 5, v{hQW}")
    p.e(f"v_lshl_add_u32 v{hQW}, v{t + 1}, 1, v{hQW}\ns_lshl_b32 s6, s{sH}, 7\nv_add_u32 v{hQW}, s6, v{hQW}")
    p.e(f"s_lshl_b32 s6, s70, 10\ns_lshl_b32 s7, s71, 3\ns_add_u32 s6, s6, s7\ns_add_u32 s6, s6, {PB}\nv_add_u32 v{hPR}, s6, v{hW}")
    p.e(f"v_lshlrev_b32 v{hLR}, 4, v30")
    p.e(f"v_lshrrev_b32 v{t + 2}, 5, v0\nv_lshlrev_b32 v{hOW}, 5, v30\nv_lshl_add_u32 v{hOW}, v{t + 2}, 4, v{hOW}")
    p.e(f"s_lshl_b32 s6, s{sH}, 2\nv_add_u32 v{hOW}, s6, v{hOW}\nv_mov_b32 v{hMX}, 0")
    p.e(f"v_add_u32 v60, 1, v30\nv_and_b32 v61, 3, v60\nv_sub_u32 v60, v60, v61\nv_mul_u32_u24 v61, {CS}, v61")
    p.e(f"v_lshl_add_u32 v61, v60, 1, v61\nv_lshl_add_u32 v61, v{t + 2}, 4, v61")
    p.e(f"s_mul_i32 s6, s70, {4 * CS}\ns_lshl_b32 s7, s71, 10\ns_add_u32 s6, s6, s7\ns_add_u32 s6, s6, {HB}\nv_add_u32 v{hH}, s6, v61")
    p.e(f"v_sub_u32 v60, 31, v30\nv_lshlrev_b32 v60, 4, v60\nv_mul_u32_u24 v61, 1536, v{t + 2}\nv_add_u32 v60, v60, v61")
    p.e(f"s_mul_i32 s76, s70, 6144\ns_add_u32 s76, s76, {UB}\ns_lshl_b32 s7, s71, 8\ns_add_u32 s6, s76, s7\nv_add_u32 v{hU}, s6, v60")
    p.e(f"v_lshlrev_b32 v166, 5, v0\nv_lshlrev_b32 v167, 5, v30\ns_lshl_b32 s77, s{sH}, 11\ns_add_u32 s83, s77, {FLAGO}\ns_add_u32 s77, s77, {FLAGQ}")
    p.e(f"s_lshr_b32 s6, s{sO}, 3\ns_lshl_b32 s6, s6, 10\ns_add_u32 s79, s6, {FLAGU}")
    p.waitall(vm=False)
    p.e(f"s_add_u32 s{sEP}, s{sEP}, 0x9e3779b1")
    p.e(f"s_lshl_b32 s6, s{sD}, 16\ns_and_b32 s7, s{sD}, 0xffff0000\ns_cmp_eq_u32 s70, 0\ns_cselect_b32 s{sD}, s6, s7")
    if OPT["stamps"]:
        p.e("v_mov_b32 v8, 0\nv_writelane_b32 v8, s90, 0")
    p.e(f"s_cmp_lg_u32 s{sH}, 0\ns_cbranch_scc1 L_h_noann")
    p.wait(ctok)
    p.e(f"s_lshl_b32 s6, s{sO}, 7\ns_add_u32 s6, s6, {FLAGC}")
    flag_store(p, 64, hW, "s6", 255)
    p.label("L_h_noann")
    if OPT.get("wqn", 0) == 0:
        wqn()
    for i in range(16):
        p.e(f"v_mov_b64 {vr(OACC + 2 * i, 2)}, 0")
    p.e(f"v_lshlrev_b32 v60, 4, v{t + 2}\nv_bfe_u32 v61, v0, 4, 1\nv_bfe_u32 v62, v0, 3, 1\nv_lshl_add_u32 v61, v62, 1, v61")
    p.e("v_lshl_add_u32 v60, v61, 2, v60\nv_bfe_u32 v62, v0, 2, 1\nv_add_u32 v60, v60, v62\nv_lshlrev_b32 v60, 7, v60")
    p.e(f"v_xor_b32 v61, s{sH}, v61\nv_lshl_add_u32 v60, v61, 5, v60\nv_and_b32 v62, 3, v0\nv_lshl_add_u32 v60, v62, 3, v60\nv_add_u32 v60, {WQN}, v60")
    stamp(p, 1)
    p.e("s_setprio 2")
    p.bar("XN")
    if OPT.get("wqn", 0) == 1:
        wqn()
    p.e(f"v_lshlrev_b32 v63, 7, v0\ns_lshl_b32 s60, s{sH}, 13\ns_add_u32 s60, s60, {FLAGC}")
    poll(p, "h_fc", f"buffer_load_dword v164, v63, {WS}, s60 offen sc1", [164], 78)
    stamp(p, 2)
    p.bar("PUB")
    stamp(p, 3)

    frags = []
    for L in range(2):
        order = ["Q0", "Q1", "Q2", "O0", "Q3", "O1", "Q4", "O2", "Q5", "O3", "Q6", "O4", "Q7", "O5", "O6", "O7"]
        for nm in order:
            base = (WQS if nm[0] == "Q" else WOS) + int(nm[1]) * 65536
            frags += [base + i * 2048 for i in range(8)]
    sacc_slots = [SACC + 8 * i for i in range(4)]
    st = Stream(p, frags, sacc_slots + [RING + 8 * i for i in range(6)])
    st.retired = set(sacc_slots)
    st.limit = 8
    for kb in range(8):
        slot = st.free.pop(0)
        for a in range(4):
            p.e(f"ds_read_b64_tr_b16 {vr(slot + 2 * a, 2)}, v60 offset:{(64 * kb + 32 * (a >> 1) + 2 * (a & 1)) * 128}")
        st.inflight.append(slot)
    st.next_issue = 8

    def qproj(tile):
        def head():
            p.e(f"ds_read_b128 {vr(QACC, 4)}, v{hZ}")
            p.e(f"ds_read_b128 {vr(AF, 4)}, v{hXN} offset:{XN}")
        yield head
        for kb in range(8):
            def step(kb=kb):
                if kb < 7:
                    p.e(f"ds_read_b128 {vr(AF + 4 * ((kb + 1) & 1), 4)}, v{hXN} offset:{XN + (kb + 1) * 1024}")
                s = st.take()
                p.e(f"v_smfmac_f32_16x16x64_bf16 {vr(QACC, 4)}, {vr(AF + 4 * (kb & 1), 4)}, {vr(s, 8)}, v{hIDX}")
                st.release(s)
            yield step

        def fin():
            p.e(f"v_add_f32 v{t}, v{QACC}, v{QACC + 1}\nv_add_f32 v{t + 1}, v{QACC + 2}, v{QACC + 3}")
            p.e(f"v_cvt_pk_bf16_f32 v{t}, v{t}, v{t + 1}")
            p.e(f"ds_write_b16 v{hQW}, v{t} offset:{QF + tile * 1024}\nds_write_b16_d16_hi v{hQW}, v{t} offset:{QF + tile * 1024 + 16}")
        yield fin

    def reduce():
        a, L = HT, HT + 16
        p.e(f"ds_read_b128 {vr(L, 4)}, v{hLR} offset:{LP}\nds_read_b128 {vr(L + 4, 4)}, v{hLR} offset:{LP + 512}")
        for w in range(8):
            p.e(f"ds_read_b64 {vr(a + 2 * w, 2)}, v{hPR} offset:{w * 2048}")
        for i in range(1, 8):
            p.e(f"v_add_f32 v{L}, v{L}, v{L + i}")
        p.e(f"v_rcp_f32 v{L + 1}, v{L}")
        p.waitall(vm=False)
        for w in range(1, 8):
            p.e(f"v_add_f32 v{a}, v{a}, v{a + 2 * w}\nv_add_f32 v{a + 1}, v{a + 1}, v{a + 2 * w + 1}")
        p.e(f"v_mul_f32 v{a}, v{a}, v{L + 1}\nv_mul_f32 v{a + 1}, v{a + 1}, v{L + 1}")
        p.e(f"v_cvt_pk_bf16_f32 v{a}, v{a}, v{a + 1}")
        p.e(f"ds_write_b32 v{hOW}, v{a} offset:{OA}")
        p.e(f"v_max3_f32 v{hMX}, v{hMX}, v{L}, v{L + 1}")

    def oproj(pump=True):
        yield lambda: p.e(f"ds_read_b128 {vr(AF, 4)}, v{hW} offset:{OA}")
        for ct in range(8):
            def step(ct=ct):
                s = st.take()
                p.e(f"v_smfmac_f32_16x16x64_bf16 {vr(OACC + 4 * ct, 4)}, {vr(AF, 4)}, {vr(s, 8)}, v{hIDX}")
                st.release(s, pump)
            yield step

    def ssm(i0, n):
        Al, Ah, B0, B1 = HT, HT + 4, HT + 8, HT + 12
        D0, D1 = SACC, SACC + 16

        def boff(i):
            b8 = 2 * i - 4
            return (b8 & 3) * 1536 + ((b8 >> 2) + 1) * 16

        rAl = lambda i: p.e(f"ds_read_b64 {vr(Al, 2)}, v{hH} offset:{32 * i}\nds_read_b64 {vr(Al + 2, 2)}, v{hH} offset:{32 * i + 8}")
        rAh = lambda i: p.e(f"ds_read_b64 {vr(Ah, 2)}, v{hH} offset:{32 * i + 2048}\nds_read_b64 {vr(Ah + 2, 2)}, v{hH} offset:{32 * i + 2056}")
        rB0 = lambda i: p.e(f"ds_read_b128 {vr(B0, 4)}, v{hU} offset:{boff(i) + 512}")
        rB1 = lambda i: p.e(f"ds_read_b128 {vr(B1, 4)}, v{hU} offset:{boff(i)}")
        if n:
            yield lambda: (rB1(i0), rAl(i0), rB0(i0), rAh(i0))
        for i in range(i0, i0 + n):
            more = i + 1 < i0 + n

            def m1(i=i, more=more):
                p.e(f"v_mfma_f32_32x32x16_bf16 {vr(D1, 16)}, {vr(Al, 4)}, {vr(B1, 4)}, {vr(D1, 16) if i else 0}")
                if more: rB1(i + 1)

            def m2(i=i, more=more):
                p.e(f"v_mfma_f32_32x32x16_bf16 {vr(D0, 16)}, {vr(Al, 4)}, {vr(B0, 4)}, {vr(D0, 16) if i else 0}")
                if more: rAl(i + 1)

            def m3(i=i, more=more):
                p.e(f"v_mfma_f32_32x32x16_bf16 {vr(D1, 16)}, {vr(Ah, 4)}, {vr(B0, 4)}, {vr(D1, 16)}")
                if more: rB0(i + 1); rAh(i + 1)
            yield m1
            yield m2
            yield m3

    def ssm_send():
        p.e(f"v_add_u32 v{t}, s75, v{hW}")
        p.e("s_nop 7\ns_nop 3")
        p.waitall(vm=False)
        p.e("s_cmp_eq_u32 s71, 0\ns_cbranch_scc1 L_h_s0")
        for i in range(4):
            p.e(f"ds_write_b128 v{t}, {vr(SACC + 4 * i, 4)} offset:{i * 1024}")
        p.e("s_branch L_h_s1")
        p.label("L_h_s0")
        for i in range(4):
            p.e(f"ds_write_b128 v{t}, {vr(SACC + 16 + 4 * i, 4)} offset:{i * 1024}")
        p.label("L_h_s1")
        p.waitall(vm=False)

    ytok = [None]

    def ssm_finish():
        R = HT

        def a0():
            p.e(f"s_xor_b32 s82, s{sH}, 1\ns_lshl_b32 s82, s82, 12\ns_add_u32 s82, s82, {SX}\nv_add_u32 v164, s82, v{hW}")
            for i in range(4):
                p.e(f"ds_read_b128 {vr(R + 4 * i, 4)}, v164 offset:{i * 1024}")
            p.e(f"v_lshrrev_b32 v{t + 2}, 5, v0\nv_lshl_add_u32 v164, v{t + 2}, 3, v{hLR}")
            p.e(f"s_lshl_b32 s7, s71, 9\ns_sub_u32 s7, s76, s7\ns_add_u32 s7, s7, {63 * 16 + 8}\nv_sub_u32 v164, s7, v164")
            for b in range(4):
                p.e(f"ds_read_b64 {vr(R + 16 + 2 * b, 2)}, v164 offset:{(3 - b) * 1536}")
        yield a0

        def a1():
            p.waitall(vm=False)
            p.e("s_cmp_eq_u32 s71, 0\ns_cbranch_scc1 L_h_f0")
            for i in range(16):
                p.e(f"v_add_f32 v{R + i}, v{R + i}, v{SACC + 16 + i}")
            p.e("s_branch L_h_f1")
            p.label("L_h_f0")
            for i in range(16):
                p.e(f"v_add_f32 v{R + i}, v{R + i}, v{SACC + i}")
            p.label("L_h_f1")
            p.e(f"v_mul_u32_u24 v164, 5, v{hLR}\nv_lshl_add_u32 v164, v{t + 2}, 3, v164\nv_add_u32 v164, s82, v164")
        yield a1
        for b in range(4):
            def ab(b=b):
                u0, u1 = R + 16 + 2 * b, R + 17 + 2 * b
                p.e(f"v_and_b32 v165, 0xffff0000, v{u1}\nv_fmac_f32 v{R + 4 * b}, s{sD}, v165")
                p.e(f"v_lshlrev_b32 v165, 16, v{u1}\nv_fmac_f32 v{R + 4 * b + 1}, s{sD}, v165")
                p.e(f"v_and_b32 v165, 0xffff0000, v{u0}\nv_fmac_f32 v{R + 4 * b + 2}, s{sD}, v165")
                p.e(f"v_lshlrev_b32 v165, 16, v{u0}\nv_fmac_f32 v{R + 4 * b + 3}, s{sD}, v165")
                p.e(f"v_cvt_pk_bf16_f32 v{R + 4 * b}, v{R + 4 * b}, v{R + 4 * b + 1}\nv_cvt_pk_bf16_f32 v{R + 4 * b + 1}, v{R + 4 * b + 2}, v{R + 4 * b + 3}")
                p.e(f"ds_write_b64 v164, {vr(R + 4 * b, 2)} offset:{b * 16}")
            yield ab

        def a2():
            p.e(f"v_lshrrev_b32 v164, 2, v0\nv_lshl_add_u32 v164, v164, 4, v{hW}\nv_add_u32 v164, s82, v164")
            p.e(f"ds_read_b128 {vr(R, 4)}, v164\nds_read_b128 {vr(R + 4, 4)}, v164 offset:1280")
        yield a2

        def a3():
            p.e(f"s_lshl_b32 s6, s72, 12\ns_lshl_b32 s7, s71, 11\ns_add_u32 s6, s6, s7\ns_add_u32 s6, s6, {YT}")
            p.e(f"buffer_store_dwordx4 {vr(R, 4)}, v{hW}, {WS}, s6 offen sc1")
            ytok[0] = p.e(f"buffer_store_dwordx4 {vr(R + 4, 4)}, v{hW}, {WS}, s6 offen offset:1024 sc1")
        yield a3

    def checked(name, load, regs):
        for i, r in enumerate(regs):
            if i == 0:
                p.e(f"v_cmp_ne_u32 vcc, s{sEP}, v{r}")
            else:
                p.e(f"v_cmp_ne_u32 s[6:7], s{sEP}, v{r}\ns_or_b64 vcc, vcc, s[6:7]")
        p.e(f"s_cbranch_vccnz L_{name}_slow")
        p.label(f"L_{name}_back")
        slow.label(f"L_{name}_slow")
        poll(slow, name, load, regs, 78)
        slow.e(f"s_branch L_{name}_back")

    det = [16]
    cur = [0]

    def sync(name):
        p.waitall(vm=False)
        d = OPT["stamps"] and OPT.get("detail", 0) == cur[0]
        if d:
            stamp(p, det[0]); det[0] += 1
        p.bar(name)
        if d:
            stamp(p, det[0]); det[0] += 1

    def h_copies():
        r = SACC
        for ce in range(2):
            def dma(ce=ce):
                p.e(f"s_add_u32 m0, s73, {ce * CS + 64}\ns_lshl_b32 s6, s71, 2\ns_add_u32 s6, s6, {2 * ce}")
                for i in range(4):
                    p.e(f"buffer_load_dwordx4 v{hW}, s[52:55], s6 offen offset:{i * 1024} lds")
            yield dma

        def head():
            p.e(f"v_lshrrev_b32 v{r}, 5, v0\nv_lshrrev_b32 v{r + 1}, 3, v{hLR}\nv_lshl_add_u32 v{r + 2}, v{r}, 1, v{r + 1}")
            p.e(f"s_lshl_b32 s6, s71, 2\ns_sub_u32 s6, s6, 64\nv_add_u32 v{r + 2}, s6, v{r + 2}")
            p.e(f"buffer_load_ushort v{r + 2}, v{r + 2}, s[52:55], 0 offen")
            p.e(f"v_mul_u32_u24 v{r + 3}, {CS}, v{r}\nv_add3_u32 v{r + 3}, v{r + 3}, v{r + 1}, s73")
            p.e(f"v_mul_u32_u24 v{r}, 1536, v{r}\nv_add3_u32 v{r}, v{r}, v{hLR}, s74")
            p.e(f"ds_read_b128 {vr(r + 4, 4)}, v{hZ}")
            p.e(f"ds_write_b128 v{r}, {vr(r + 4, 4)} offset:1024")
        yield head

    SS = [0, 6, 11, 17, 22, 28, 32]

    def ssm_at(L, k):
        return ssm(SS[k], SS[k + 1] - SS[k]) if L == 0 and 0 <= k < 6 else []

    for L in range(2):
        cur[0] = L
        merge(qproj(0), [])
        p.e(f"v_mov_b32 v{t}, {L + 1}\nv_mov_b32 v{t + 1}, s{sH}\nv_lshlrev_b32 v{t + 1}, 2, v{t + 1}")
        p.e(f"ds_write_b32 v{t + 1}, v{t} offset:{QRDY}")
        stamp(p, 4 + 8 * L)
        if L == 1:
            p.bar("PUB")
        else:
            poll(p, "h_fw", f"buffer_load_dword v164, v166, {WS}, s77 offen sc1", [164], 78)
            st.limit = 16
            st.free = sacc_slots[:2] + st.free
            st.pump()
        if OPT["stamps"] and OPT.get("detail", 0) == L:
            stamp(p, det[0]); stamp(p, det[0] + 1); det[0] += 2
        merge(qproj(1), [])
        if L == 0:
            if PREP == 3:
                p.waitall(vm=False)
                prep_loads(p, prep_regs(48), sH)
            oload = f"buffer_load_dword v165, v166, {WS}, s83 offen sc1"
            p.e(oload)
            st.limit = 24
            st.pump()
        sync("X0")
        if L == 0:
            if PREP == 3:
                prep_compute(p, prep_regs(48), 75)
            stok = prep_store(p, prep_regs(48), sH, 75)
            checked("h_fo", oload, [165])
            st.limit = len(frags)
        sync("Y1")
        for j in range(1, 8):
            reduce()
            if L == 0 and j == 2:
                checked("h_fu", uload, [164])
                p.e(f"v_lshlrev_b32 v165, 6, v0\ns_lshl_b32 s6, s72, 12\ns_lshl_b32 s7, s71, 5\ns_add_u32 s6, s6, s7\ns_add_u32 s6, s6, {UR}\ns_add_u32 s7, s6, 16")
                p.e("s_mov_b32 m0, s74")
                p.e(f"buffer_load_dwordx4 v165, {WS}, s6 offen sc1 lds")
                p.e("s_add_u32 m0, s74, 1536")
                utok = p.e(f"buffer_load_dwordx4 v165, {WS}, s7 offen sc1 lds")
                p.e(f"ds_write_b16 v{SACC + 3}, v{SACC + 2}")
            side = ssm_at(L, 2 * j - 5)
            if L == 0 and j == 1:
                def utag():
                    p.wait(stok)
                    p.e(f"s_lshr_b32 s6, s{sO}, 5\ns_lshl_b32 s6, s6, 2\ns_add_u32 s6, s6, s{sH}\ns_lshl_b32 s6, s6, 5\ns_and_b32 s7, s{sO}, 31\ns_add_u32 s6, s6, s7\ns_lshl_b32 s6, s6, 5\ns_add_u32 s6, s6, {FLAGU}")
                    flag_store(p, SACC + 12, hW, "s6")
                side = [lambda: None, utag]
            if L == 0 and j == 6:
                def ytag():
                    p.wait(ytok[0])
                    p.e("s_and_b32 s6, s72, 7\ns_lshl_b32 s6, s6, 11\ns_lshr_b32 s7, s72, 3\ns_lshl_b32 s7, s7, 5\ns_add_u32 s6, s6, s7")
                    p.e(f"s_lshl_b32 s7, s71, 14\ns_add_u32 s6, s6, s7\ns_add_u32 s6, s6, {FLAG2}")
                    flag_store(p, HT + 4, hW, "s6")
                side = [ytag]
            merge(qproj(j + 1) if j < 7 else [], side)
            if L == 0 and j == 2:
                p.wait(utok)
            if L == 0 and j == 5:
                ssm_send()
            if L == 0 and j == 7:
                p.e(f"s_lshr_b32 s6, s{sO}, 7\ns_lshl_b32 s6, s6, 14\ns_lshl_b32 s7, s{sH}, 12\ns_add_u32 s6, s6, s7\ns_add_u32 s79, s6, {FLAG2}")
                yload = f"buffer_load_dword v164, v166, {WS}, s79 offen sc1\nbuffer_load_dword v165, v166, {WS}, s79 offen offset:2048 sc1"
                p.e(yload)
                checked("h_fy", yload, [164, 165])
                p.e(f"v_lshlrev_b32 v166, 15, v0\ns_lshl_b32 s6, s{sH}, 13\ns_lshl_b32 s7, s{sO}, 4\ns_add_u32 s6, s6, s7\ns_add_u32 s6, s6, {YT}\ns_add_u32 s7, s6, 4096")
                p.e(f"s_lshl_b32 s80, s{sH}, 11\ns_add_u32 m0, s80, {YB}")
                p.e(f"buffer_load_dwordx4 v166, {WS}, s6 offen sc1 lds")
                p.e(f"s_add_u32 m0, s80, {YB + 1024}")
                gtok = p.e(f"buffer_load_dwordx4 v166, {WS}, s7 offen sc1 lds")
            sync(f"X{j}")
            side = ssm_at(L, 2 * j - 4)
            if L == 0 and j == 1:
                side = h_copies()
            if L == 0 and j == 5:
                side = ssm_finish()
            merge(oproj(), side)
            if L == 0 and j == 1:
                uload = f"buffer_load_dword v164, v167, {WS}, s79 offen sc1"
                p.e(uload)
            if L == 0 and j == 5:
                st.retired = set()
                st.free += sacc_slots
                st.pump()
            if j == 7:
                p.e(f"v_lshrrev_b32 v{t}, 4, v0\nv_mul_u32_u24 v{t}, {2 * RS}, v{t}\nv_and_b32 v{t + 1}, 15, v0\nv_lshl_add_u32 v{t}, v{t + 1}, 5, v{t}")
                p.e(f"s_lshl_b32 s6, s{sH}, 9\ns_add_u32 s6, s6, {PB}\nv_add_u32 v{t}, s6, v{t}")
            sync(f"Y{j + 1}")
        reduce()
        if L == 0:
            p.wait(gtok)
        sync("X8")
        merge(oproj(pump=False), [])
        for ct in range(8):
            p.e(f"v_add_f32 v{HT + ct}, v{OACC + 4 * ct}, v{OACC + 4 * ct + 1}\nv_add_f32 v{HT + 8 + ct}, v{OACC + 4 * ct + 2}, v{OACC + 4 * ct + 3}")
            if ct == 3:
                p.e(f"ds_write_b128 v{t}, {vr(HT, 4)}\nds_write_b128 v{t}, {vr(HT + 8, 4)} offset:{RS}")
        p.e(f"ds_write_b128 v{t}, {vr(HT + 4, 4)} offset:16\nds_write_b128 v{t}, {vr(HT + 12, 4)} offset:{RS + 16}")
        sync("OUT")
        if L == 0:
            st.pump()
            for i in range(16):
                p.e(f"v_mov_b64 {vr(OACC + 2 * i, 2)}, 0")
            p.bar("XN")
    stamp_flush(p)
    p.e("s_endpgm")
    p.ins += slow.ins
    return p


def main():
    ref = open(f"cdna_kernels/{NAME}.s.ref").read()
    head = [l for l in ref.split("\n") if l.startswith(";") and "@launch" not in l]
    pro, att, hel = prologue(), attention_wave(), helper_wave()
    assert att.bars + att.bars == hel.bars, (att.bars, hel.bars)
    out = "\n".join(head) + f"\n; @launch grid=(256,1,1) block=(768,1,1) lds={LDS_SIZE}\n"
    out += f""".amdgcn_target "amdgcn-amd-amdhsa--gfx950"
.text
.globl {NAME}_kernel
.p2align 8
.type {NAME}_kernel,@function
{NAME}_kernel:
"""
    out += pro.text() + att.text() + hel.text() + "L_exit:\n    s_endpgm\n"
    out += f""".section .rodata,"a"
.p2align 6
.amdhsa_kernel {NAME}_kernel
  .amdhsa_next_free_vgpr 168
  .amdhsa_next_free_sgpr 96
  .amdhsa_accum_offset 168
  .amdhsa_group_segment_fixed_size 0
  .amdhsa_kernarg_size 112
  .amdhsa_user_sgpr_count 2
  .amdhsa_user_sgpr_kernarg_segment_ptr 1
  .amdhsa_system_sgpr_workgroup_id_x 1
.end_amdhsa_kernel
"""
    open(sys.argv[1], "w").write(out)
    print("nops added:", pro.nops_added, att.nops_added, hel.nops_added, "instr:", len(att.ins), len(hel.ins))


main()
```

```python
import sys, os
sys.path.insert(0, os.path.dirname(os.path.abspath(__file__)))
from asmlib import Prog

NAME = "interleave_layers__grouped_kv_mqa__ssm_conv_h3__prompt"
OPT = dict(stamps=0)
for a in sys.argv[2:]:
    k, v = a.split("=")
    OPT[k] = int(v)

EPOCH = 0
FLAGC = 0x8000
FLAGQ = 0x4000
FLAGO = 0x6000
FLAGU = 0x50000
FLAG2 = 0x58000
KV1 = 0x10000
KV2 = 0x30000
WQS = 0x100000
WOS = 0x180000
UR = 0x200000
YT = 0x400000
STAMP = 0x600000
WS_SIZE = 0x700000
ZP = 0
QRDY = 0x40
KVST = 0x100
QF = 0x400
OA = 0x2400
LP = 0x2800
XN = 0x2C00
YB = 0x4C00
PB = 0x6C00
RS = 2080
WKV = 0xAE00
SX = 0x13000
UB = 0x17000
HB = 0x1A000
CS = 4160
WQN = UB
LDS_SIZE = 0x27000
SPIN = 20000
SCALE = 0x3EB8AA3B

sW, sO, sEP = 3, 4, 5
pX, pWQ, pWK, pWV, pWO, pBK, pBV, pSH, pSK, pSD, pOUT, pDBG, pWS = 8, 10, 12, 14, 16, 20, 22, 24, 26, 28, 30, 32, 34
WS = "s[36:39]"
SA, SB, SC = "s[40:43]", "s[44:47]", "s[48:51]"


def vr(a, n=1):
    return f"v{a}" if n == 1 else f"v[{a}:{a + n - 1}]"


def srd(p, base, ptr, size):
    p.e(f"s_mov_b32 s{base}, s{ptr}\ns_mov_b32 s{base + 1}, s{ptr + 1}\ns_mov_b32 s{base + 2}, {size}\ns_mov_b32 s{base + 3}, 0x20000")


_st = [0]


def stamp(p, idx):
    if "echo" in OPT and p.name == "attn" and OPT["echo"] % 8 == idx and 0 <= OPT["echo"] < 100:
        p.waitall(vm=False)
        p.e("s_memrealtime s[92:93]")
        p.waitall(vm=False)
        p.e(f"s_cmp_eq_u32 s56, {OPT['echo'] // 8}\ns_cselect_b32 s94, s92, s94")
    if not OPT["stamps"]:
        return
    p.waitall(vm=False)
    p.e("s_memrealtime s[92:93]")
    p.waitall(vm=False)
    p.e(f"v_writelane_b32 {p.stampreg}, s92, {idx}")


def stamp_flush(p):
    if not OPT["stamps"]:
        return
    p.e(f"s_mul_i32 s92, s{sO}, 12\ns_add_u32 s92, s92, s{sW}\ns_lshl_b32 s92, s92, 8\ns_add_u32 s92, s92, {STAMP}")
    p.e("v_lshlrev_b32 v1, 2, v0")
    p.e(f"buffer_store_dword {p.stampreg}, v1, {WS}, s92 offen")


def poll(p, name, load, regs, tmp_s):
    p.e(f"s_mov_b32 s{tmp_s}, {SPIN}")
    p.label(f"L_{name}")
    p.e(load)
    p.waitall(lg=False)
    for i, r in enumerate(regs):
        if i == 0:
            p.e(f"v_cmp_ne_u32 vcc, s{sEP}, v{r}")
        else:
            p.e(f"v_cmp_ne_u32 s[6:7], s{sEP}, v{r}\ns_or_b64 vcc, vcc, s[6:7]")
    p.e(f"s_cbranch_vccz L_{name}_ok")
    p.e(f"s_sleep 8\ns_sub_u32 s{tmp_s}, s{tmp_s}, 1\ns_cmp_lg_u32 s{tmp_s}, 0\ns_cbranch_scc1 L_{name}")
    p.label(f"L_{name}_ok")


def flag_store(p, t4, va, so, lanes=3):
    for i in range(4):
        p.e(f"v_mov_b32 v{t4 + i}, s{sEP}")
    p.e(f"s_mov_b64 exec, {lanes}")
    p.e(f"buffer_store_dwordx4 {vr(t4, 4)}, v{va}, {WS}, {so} offen sc1")
    p.e("s_mov_b64 exec, -1")


def prologue():
    p = Prog("pro")
    p.e("s_cmp_ge_u32 s2, 256\ns_cbranch_scc1 L_exit")
    if OPT["stamps"] or "echo" in OPT:
        p.e("s_memrealtime s[90:91]")
    p.e("s_setprio 3")
    p.e("s_load_dwordx16 s[8:23], s[0:1], 0\ns_load_dwordx8 s[24:31], s[0:1], 64\ns_load_dwordx4 s[32:35], s[0:1], 96")
    p.e("v_lshrrev_b32 v1, 6, v0\nv_and_b32 v0, 63, v0")
    p.e(f"v_readfirstlane_b32 s{sW}, v1")
    p.e(f"s_and_b32 s6, s2, 7\ns_lshl_b32 s6, s6, 5\ns_lshr_b32 s7, s2, 3\ns_add_u32 s{sO}, s6, s7")
    p.waitall(vm=False)
    p.e(f"s_load_dword s{sEP}, s[{pWS}:{pWS + 1}], {EPOCH}")
    if OPT.get("cpf", 1):
        p.e(f"s_getpc_b64 s[84:85]\ns_mul_i32 s6, s7, 12\ns_add_u32 s6, s6, s{sW}\ns_lshl_b32 s6, s6, 7\ns_min_u32 s6, s6, L_exit-{NAME}_kernel-256")
        p.e("s_load_dword s86, s[84:85], s6\ns_add_u32 s6, s6, 64\ns_load_dword s87, s[84:85], s6")
    srd(p, 36, pWS, WS_SIZE)
    p.e(f"s_cmp_ge_u32 s{sW}, 8\ns_cbranch_scc1 L_helper")
    return p


aL, aZ, aQ, aP, IDX = 1, 2, 4, 5, 6
X, Q, T, O, S, K, V = 8, 16, 20, 24, 40, 72, 104
aK, aV = T + 1, T + 2
sLAY, sKV0, sPUB, sSC, sRET = 56, 64, 58, 59, 57
MLO, MHI = "s[60:61]", "s[62:63]"


def layernorm(p, x, t):
    s, q = t, t + 1
    p.e(f"v_add_f32 v{s}, v{x}, v{x + 1}\nv_mul_f32 v{q}, v{x}, v{x}")
    p.e(f"v_fmac_f32 v{q}, v{x + 1}, v{x + 1}")
    for i in range(2, 8):
        p.e(f"v_add_f32 v{s}, v{s}, v{x + i}\nv_fmac_f32 v{q}, v{x + i}, v{x + i}")
    for m in ("quad_perm:[1,0,3,2] row_mask:0xf", "quad_perm:[2,3,0,1] row_mask:0xf", "row_half_mirror row_mask:0xf",
              "row_mirror row_mask:0xf", "row_bcast:15 row_mask:0xa", "row_bcast:31 row_mask:0xc"):
        p.e(f"v_add_f32_dpp v{s}, v{s}, v{s} {m} bank_mask:0xf")
        p.e(f"v_add_f32_dpp v{q}, v{q}, v{q} {m} bank_mask:0xf")
    p.e(f"v_mul_f32 v{s}, 0x3b000000, v{s}\nv_mul_f32 v{q}, 0x3b000000, v{q}")
    p.e(f"v_fma_f32 v{q}, -v{s}, v{s}, v{q}\nv_max_f32 v{q}, 0, v{q}\nv_add_f32 v{q}, 0x3727c5ac, v{q}")
    p.e(f"v_rsq_f32 v{q}, v{q}")
    p.e(f"v_mul_f32_e64 v{s}, -v{s}, v{q}")
    p.e(f"v_readlane_b32 s68, v{q}, 63\nv_readlane_b32 s69, v{s}, 63")
    p.e(f"v_mov_b32 v{s}, s69")


def wkv_reads(p):
    t = T
    p.e(f"v_lshrrev_b32 v{t}, 5, v0\nv_lshlrev_b32 v{t}, 4, v{t}")
    p.e(f"v_bfe_u32 v{t + 1}, v0, 4, 1\nv_lshl_add_u32 v{t}, v{t + 1}, 2, v{t}")
    p.e(f"v_bfe_u32 v{t + 1}, v0, 3, 1\nv_lshl_add_u32 v{t}, v{t + 1}, 3, v{t}")
    p.e(f"v_bfe_u32 v{t + 1}, v0, 2, 1\nv_add_u32 v{t}, v{t}, v{t + 1}")
    p.e(f"v_and_b32 v{t + 1}, 3, v0\nv_lshlrev_b32 v{t + 1}, 3, v{t + 1}\nv_lshl_add_u32 v{t}, v{t}, 5, v{t + 1}")
    p.e(f"s_lshl_b32 s6, s{sW}, 14\ns_add_u32 s6, s6, {WKV}\nv_add_u32 v{t}, s6, v{t}")
    for kb in range(8):
        for a in range(4):
            off = (64 * kb + 32 * (a >> 1) + 2 * (a & 1)) * 32
            p.e(f"ds_read_b64_tr_b16 {vr(S + 8 * kb + 2 * a, 2)}, v{t} offset:{off}")


def kv_loads(p, kt):
    so = f"s{sKV0 + (kt >> 1)}"
    im = (kt & 1) * 2048
    p.e(f"buffer_load_dwordx4 {vr(K + 4 * kt, 4)}, v{aK}, {WS}, {so} offen offset:{im} sc1")
    p.e(f"buffer_load_dwordx4 {vr(V + 8 * kt, 4)}, v{aV}, {WS}, {so} offen offset:{im} sc1")


def w_gather(p):
    p.e("v_and_b32 v57, 15, v0\nv_lshrrev_b32 v58, 4, v0")
    p.e(f"s_bfe_u32 s6, s{sO}, 0x20003\ns_lshr_b32 s7, s{sO}, 5\ns_and_b32 s78, s{sO}, 7")
    p.e(f"s_lshl_b32 s79, s6, 6\ns_lshl_b32 s72, s7, 3\ns_add_u32 s79, s79, s72\ns_add_u32 s79, s79, s78\ns_lshl_b32 s79, s79, 5")
    p.e(f"s_cmp_eq_u32 s{sW}, 3\ns_cbranch_scc1 L_a_wo")
    srd(p, 44, pWQ, 0x80000)
    p.e("v_lshrrev_b32 v59, 5, v0\nv_lshlrev_b32 v56, 14, v59\nv_and_b32 v59, 1, v58\nv_lshl_add_u32 v56, v59, 12, v56\nv_lshl_add_u32 v56, v57, 1, v56")
    p.e(f"s_lshl_b32 s72, s78, 16\ns_lshr_b32 s6, s{sO}, 3\ns_lshl_b32 s6, s6, 5\ns_add_u32 s72, s72, s6")
    p.e("s_add_u32 s73, s72, 8192\ns_add_u32 s74, s72, 32768\ns_add_u32 s75, s72, 40960")
    p.e(f"v_mov_b32 v103, v{aQ}\ns_lshl_b32 s76, s{sO}, 11\ns_add_u32 s76, s76, {WQS}\ns_add_u32 s77, s76, 1024\ns_add_u32 s79, s79, {FLAGQ}")
    p.e("s_branch L_a_wg")
    p.label("L_a_wo")
    srd(p, 44, pWO, 0x80000)
    p.e("v_lshlrev_b32 v57, 4, v57\nv_lshl_add_u32 v103, v58, 11, v57\nv_lshl_add_u32 v56, v58, 1, v57")
    p.e("s_lshl_b32 s72, s7, 16\ns_lshl_b32 s73, s78, 13\ns_add_u32 s72, s72, s73\ns_lshl_b32 s73, s6, 8\ns_add_u32 s72, s72, s73")
    p.e("s_add_u32 s73, s72, 4096\ns_add_u32 s74, s72, 8\ns_add_u32 s75, s72, 4104")
    p.e("s_lshl_b32 s76, s7, 16\ns_lshl_b32 s6, s6, 14\ns_add_u32 s76, s76, s6\ns_lshl_b32 s6, s78, 8\ns_add_u32 s76, s76, s6")
    p.e(f"s_add_u32 s76, s76, {WOS}\ns_add_u32 s77, s76, 8192\ns_add_u32 s79, s79, {FLAGO}")
    p.label("L_a_wg")
    for hf in range(2):
        for j in range(4):
            for e in range(2):
                p.e(f"buffer_load_ushort v{40 + 8 * hf + 2 * j + e}, v56, {SB}, s{72 + 2 * hf + (j & 1)} offen offset:{(2 * (j >> 1) + e) * 1024}")


def prep_regs(base):
    return dict(KR=base, VR=base + 11, SH=base + 20, PW=base + 24, KU=base + 29, PU=base + 40, PO=base + 48, PA=base + 56)


def prep_loads(p, R, hw):
    KR, VR, SH, PA = R["KR"], R["VR"], R["SH"], R["PA"]
    srd(p, 44, pBK, 0x200000)
    srd(p, 48, pBV, 0x200000)
    srd(p, 40, pSH, 0x1000)
    p.e(f"v_lshrrev_b32 v{PA}, 3, v0\nv_and_b32 v{PA + 1}, 7, v0")
    p.e(f"v_lshlrev_b32 v{PA + 2}, 13, v{PA}\nv_lshl_add_u32 v{PA + 2}, v{PA + 1}, 2, v{PA + 2}")
    p.e(f"s_and_b32 s6, s{sO}, 31\ns_lshr_b32 s62, s{sO}, 5")
    p.e(f"s_lshl_b32 s6, s6, 16\ns_lshl_b32 s7, s62, 7\ns_add_u32 s6, s6, s7\ns_lshl_b32 s7, s{hw}, 5\ns_add_u32 s60, s6, s7\ns_add_u32 s61, s60, 4096")
    p.e(f"s_sub_u32 s6, s60, 3072\nv_add_u32 v{PA + 3}, s6, v{PA + 2}")
    p.e(f"s_lshl_b32 s6, s62, 9\ns_lshl_b32 s7, s{hw}, 7\ns_add_u32 s6, s6, s7\nv_lshlrev_b32 v{PA + 4}, 4, v{PA + 1}")
    p.e(f"buffer_load_dwordx4 {vr(SH, 4)}, v{PA + 4}, {SA}, s6 offen")
    for r in range(3):
        p.e(f"buffer_load_dword v{KR + r}, v{PA + 3}, {SB}, 0 offen offset:{r * 1024}")
    for r in range(8):
        p.e(f"buffer_load_dword v{KR + 3 + r}, v{PA + 2}, {SB}, s{60 + (r >> 2)} offen offset:{(r & 3) * 1024}")
    for r in range(8):
        p.e(f"buffer_load_dword v{VR + r}, v{PA + 2}, {SC}, s{60 + (r >> 2)} offen offset:{(r & 3) * 1024}")


def prep_compute(p, R, sx):
    KR, VR, SH, PW, KU, PU, PO, PA = (R[k] for k in ("KR", "VR", "SH", "PW", "KU", "PU", "PO", "PA"))
    for c in range(2):
        un = (lambda d, s: f"v_lshlrev_b32 v{d}, 16, v{s}") if c == 0 else (lambda d, s: f"v_and_b32 v{d}, 0xffff0000, v{s}")
        for j in range(2):
            p.e(f"v_lshlrev_b32 v{PW + 2 * j}, 16, v{SH + 2 * c + j}\nv_and_b32 v{PW + 2 * j + 1}, 0xffff0000, v{SH + 2 * c + j}")
        for r in reversed(range(11)):
            p.e(un(KU + r, KR + r))
        for r in reversed(range(8)):
            p.e(f"v_mul_f32 v{PU + r}, v{PW}, v{KU + 3 + r}")
            for j in range(1, 4):
                p.e(f"v_fmac_f32 v{PU + r}, v{PW + j}, v{KU + 3 + r - j}")
            p.e(un(PW + 4, VR + r))
            p.e(f"v_mul_f32 v{PU + r}, v{PU + r}, v{PW + 4}")
        for i in range(4):
            p.e(f"v_cvt_pk_bf16_f32 v{PO + 4 * c + i}, v{PU + 7 - 2 * i}, v{PU + 6 - 2 * i}")
    a2 = PA + 2
    p.e(f"v_xor_b32 v{a2}, 7, v{PA}\nv_xor_b32 v{a2}, v{a2}, v{PA + 1}\nv_lshlrev_b32 v{a2}, 4, v{a2}\nv_lshl_add_u32 v{a2}, v{PA + 1}, 8, v{a2}\nv_add_u32 v{a2}, s{sx}, v{a2}")
    p.e(f"ds_write_b128 v{a2}, {vr(PO, 4)}\nds_write_b128 v{a2}, {vr(PO + 4, 4)} offset:128")


def prep_store(p, R, hw, sx):
    PO, PA = R["PO"], R["PA"]
    a2, a3, a4 = PA + 2, PA + 3, PA + 4
    p.e(f"v_lshrrev_b32 v{PA}, 3, v0\nv_and_b32 v{PA + 1}, 7, v0")
    p.e(f"v_lshrrev_b32 v{a3}, 4, v0\nv_xor_b32 v{a3}, v{a3}, v{PA + 1}\nv_lshlrev_b32 v{a3}, 4, v{a3}\nv_lshl_add_u32 v{a3}, v{PA}, 7, v{a3}\nv_add_u32 v{a3}, s{sx}, v{a3}")
    p.e(f"v_xor_b32 v{a4}, 64, v{a3}")
    p.e(f"ds_read_b128 {vr(PO, 4)}, v{a3}\nds_read_b128 {vr(PO + 4, 4)}, v{a4} offset:1024")
    p.e(f"v_lshlrev_b32 v{a2}, 12, v{PA}\nv_lshl_add_u32 v{a2}, v{PA + 1}, 4, v{a2}")
    p.e(f"s_lshr_b32 s6, s{sO}, 5\ns_lshl_b32 s6, s6, 18\ns_lshl_b32 s7, s{hw}, 16\ns_add_u32 s6, s6, s7\ns_and_b32 s7, s{sO}, 31\ns_lshl_b32 s7, s7, 7")
    p.e(f"s_sub_u32 s6, s6, s7\ns_add_u32 s6, s6, {UR + 3968}\ns_add_u32 s7, s6, 0x8000")
    p.e(f"buffer_store_dwordx4 {vr(PO, 4)}, v{a2}, {WS}, s6 offen sc1")
    return p.e(f"buffer_store_dwordx4 {vr(PO + 4, 4)}, v{a2}, {WS}, s7 offen sc1")


PREP = OPT.get("prep", 1)


def attention_wave():
    p = Prog("attn")
    p.stampreg = "v23"
    retry = Prog("retry")
    if OPT.get("echo", -1) >= 100:
        bar0 = p.bar

        def bar(name):
            bar0(name)
            if len(p.bars) - 1 == OPT["echo"] % 100:
                print("echo at", name)
                p.waitall(vm=False)
                p.e("s_memrealtime s[92:93]")
                p.waitall(vm=False)
                p.e(f"s_cmp_eq_u32 s56, {OPT['echo'] // 100 - 1}\ns_cselect_b32 s94, s92, s94")
        p.bar = bar
    t = T
    srd(p, 40, pX, 0x200000)
    p.e(f"v_lshlrev_b32 v{aQ}, 4, v0\nv_mov_b32 v103, 0")
    p.e(f"s_lshl_b32 s6, s{sO}, 3\ns_add_u32 s6, s6, s{sW}\ns_lshl_b32 s70, s6, 10")
    p.e(f"buffer_load_dwordx4 {vr(Q, 4)}, v{aQ}, {SA}, s70 offen")
    p.e("s_setprio 1")
    p.e(f"s_cmp_ge_u32 s{sW}, 4\ns_cbranch_scc1 L_a_nodma")
    p.e(f"s_cmp_ge_u32 s{sW}, 2\ns_cbranch_scc1 L_a_wq")
    p.e(f"s_cmp_eq_u32 s{sW}, 0")
    p.e(f"s_cselect_b32 s44, s{pWK}, s{pWV}\ns_cselect_b32 s45, s{pWK + 1}, s{pWV + 1}\ns_mov_b32 s46, 0x4000\ns_mov_b32 s47, 0x20000")
    p.e(f"s_lshl_b32 s6, s{sW}, 14\ns_add_u32 s6, s6, {WKV}")
    p.e(f"s_lshl_b32 s7, s{sO}, 10")
    for i in range(16):
        p.e("s_and_b32 s7, s7, 0x3c00\ns_add_u32 m0, s6, s7")
        p.e(f"buffer_load_dwordx4 v{aQ}, {SB}, s7 offen lds")
        p.e("s_add_u32 s7, s7, 1024")
    p.e("s_branch L_a_nodma")
    p.label("L_a_wq")
    w_gather(p)
    p.label("L_a_nodma")
    p.e(f"s_lshl_b32 s6, s{sO}, 9\ns_lshl_b32 s7, s{sW}, 8\ns_add_u32 s{sPUB}, s6, s7\ns_add_u32 s{sPUB}, s{sPUB}, {KV1}")
    p.e(f"s_cmp_eq_u32 s{sW}, 0\ns_cselect_b32 s{sSC}, {SCALE}, 1.0")
    p.e(f"v_and_b32 v{t + 1}, 31, v0\nv_lshlrev_b32 v{t + 2}, 4, v{t + 1}")
    p.e(f"v_mov_b32 v{IDX}, 0xdddd\nv_mov_b32 v{aZ}, 0\nv_mov_b32 v{aZ + 1}, 0")
    p.e(f"s_lshl_b32 s6, s{sW}, 11\ns_add_u32 s6, s6, {PB}\nv_add_u32 v{aP}, s6, v{aQ}")
    p.e(f"s_lshr_b32 s6, s{sW}, 2\ns_lshl_b32 s6, s6, 9\ns_and_b32 s7, s{sW}, 3\ns_lshl_b32 s7, s7, 2\ns_add_u32 s6, s6, s7\ns_add_u32 s6, s6, {LP}")
    p.e(f"v_add_u32 v{aL}, s6, v{t + 2}")
    p.e(f"s_sub_u32 s71, s{sW}, 4\ns_lshl_b32 s80, s71, 12\ns_add_u32 s80, s80, {SX}")
    p.e(f"s_mov_b32 s{sLAY}, 0\ns_lshl_b32 s6, s{sW}, 14\ns_add_u32 s{sKV0}, s6, {KV1}")
    if OPT["stamps"]:
        p.e("v_mov_b32 v23, 0\nv_writelane_b32 v23, s90, 0")
    if "echo" in OPT:
        p.e("s_mov_b32 s94, s90")
    p.waitall()
    p.e(f"s_add_u32 s{sEP}, s{sEP}, 0x9e3779b1")
    stamp(p, 1)
    p.e(f"ds_write_b64 v{aZ}, {vr(aZ, 2)}\nds_write_b64 v{aZ}, {vr(aZ, 2)} offset:8")
    p.e(f"ds_write_b64 v{aZ}, {vr(aZ, 2)} offset:{QRDY}\nds_write_b64 v{aZ}, {vr(aZ, 2)} offset:{QRDY + 8}")
    p.e(f"s_cmp_ge_u32 s{sW}, 4\ns_cbranch_scc1 L_a_r4")
    p.e(f"s_cmp_ge_u32 s{sW}, 2\ns_cbranch_scc1 L_a_r2")
    wkv_reads(p)
    p.e("s_branch L_a_r")
    p.label("L_a_r2")
    for hf in range(2):
        for j in range(4):
            p.e(f"v_lshl_or_b32 v{60 + 4 * hf + j}, v{41 + 8 * hf + 2 * j}, 16, v{40 + 8 * hf + 2 * j}")
        p.e(f"buffer_store_dwordx4 {vr(60 + 4 * hf, 4)}, v103, {WS}, s{76 + hf} offen sc1")
    p.e("s_branch L_a_r")
    p.label("L_a_r4")
    if PREP == 0:
        prep_loads(p, prep_regs(40), 71)
    p.label("L_a_r")
    p.q["vm"] = []
    p.pend = {}
    for i in range(4):
        p.e(f"v_lshlrev_b32 v{X + 2 * i}, 16, v{Q + i}\nv_and_b32 v{X + 2 * i + 1}, 0xffff0000, v{Q + i}")
    p.label("L_a_layer")
    layernorm(p, X, T)
    for i in range(8):
        p.e(f"v_fma_f32 v{O + i}, v{X + i}, s68, v{T}")
    for i in range(4):
        p.e(f"v_cvt_pk_bf16_f32 v{Q + i}, v{O + 2 * i}, v{O + 2 * i + 1}")
    p.e(f"v_bfe_u32 v{t}, v0, 1, 2\nv_xor_b32 v{t + 1}, s{sW}, v{t}\nv_lshlrev_b32 v{t + 1}, 5, v{t + 1}")
    p.e(f"v_lshl_add_u32 v{t + 1}, v{t}, 8, v{t + 1}\nv_and_b32 v{t}, 1, v0\nv_lshl_add_u32 v{t + 1}, v{t}, 4, v{t + 1}")
    p.e(f"v_lshrrev_b32 v{t}, 3, v0\nv_lshl_add_u32 v{t + 1}, v{t}, 10, v{t + 1}")
    p.e(f"ds_write_b128 v{t + 1}, {vr(Q, 4)} offset:{XN}")
    p.waitall(vm=False)
    p.bar("XN")
    stamp(p, 2)
    p.e(f"s_cmp_ge_u32 s{sW}, 2\ns_cbranch_scc1 L_a_nokv")
    p.begin_if("kv")
    p.e(f"v_lshrrev_b32 v{t}, 4, v0\nv_lshlrev_b32 v{t + 1}, 5, v{t}\nv_xor_b32 v{t + 1}, v{t + 1}, v{aQ}")
    for kb in range(8):
        p.e(f"ds_read_b128 {vr(V + 4 * kb, 4)}, v{t + 1} offset:{XN + kb * 1024}")
    p.e(f"v_and_b32 v{t + 2}, 1, v0\nv_mul_u32_u24 v{t + 2}, 0xaaaa, v{t + 2}\nv_add_u32 v{t + 2}, 0x4444, v{t + 2}")
    p.e(f"v_mov_b64 {vr(O, 2)}, 0\nv_mov_b64 {vr(O + 2, 2)}, 0")
    p.e(f"v_bfe_u32 v{O + 4}, v0, 3, 1\nv_lshlrev_b32 v{O + 4}, 7, v{O + 4}\nv_lshl_add_u32 v{O + 4}, v{t}, 5, v{O + 4}")
    p.e(f"v_and_b32 v{O + 5}, 7, v0\nv_lshl_add_u32 v{O + 4}, v{O + 5}, 1, v{O + 4}\nv_add_u32 v{O + 5}, 16, v{O + 4}")
    p.e(f"s_cmp_eq_u32 s{sW}, 0\ns_cbranch_scc1 L_a_isk")
    p.e(f"v_and_b32 v{O + 4}, 15, v0\nv_lshlrev_b32 v{O + 4}, 4, v{O + 4}\nv_lshl_add_u32 v{O + 4}, v{t}, 2, v{O + 4}")
    p.e(f"v_add_u32 v{O + 4}, 256, v{O + 4}\nv_add_u32 v{O + 5}, 2, v{O + 4}")
    p.label("L_a_isk")
    p.e(f"s_lshl_b32 s6, s{sW}, 8\nv_add_u32 v{O + 6}, s6, v{aQ}")
    for kb in range(8):
        p.e(f"v_smfmac_f32_16x16x64_bf16 {vr(O, 4)}, {vr(V + 4 * kb, 4)}, {vr(S + 8 * kb, 8)}, v{t + 2}")
    p.e(f"v_add_f32 v{O}, v{O}, v{O + 1}\nv_add_f32 v{O + 2}, v{O + 2}, v{O + 3}")
    p.e(f"v_mul_f32 v{O}, s{sSC}, v{O}\nv_mul_f32 v{O + 2}, s{sSC}, v{O + 2}")
    p.e(f"v_cvt_pk_bf16_f32 v{O}, v{O}, v{O + 2}")
    p.e(f"ds_write_b16 v{O + 4}, v{O} offset:{KVST}\nds_write_b16_d16_hi v{O + 5}, v{O} offset:{KVST}")
    p.e("s_mov_b64 exec, 0xffff")
    p.e(f"ds_read_b128 {vr(Q, 4)}, v{O + 6} offset:{KVST}")
    p.e(f"buffer_store_dwordx4 {vr(Q, 4)}, v{aQ}, {WS}, s{sPUB} offen sc1")
    p.e("s_mov_b64 exec, -1")
    p.end_if()
    p.label("L_a_nokv")
    stamp(p, 3)

    p.e(f"v_and_b32 v{t}, 11, v0\nv_cmp_eq_u32 vcc, 0, v{t}\nv_mov_b32 v{t}, 0x3f803f80")
    p.e(f"v_cndmask_b32 v{V + 4}, 0, v{t}, vcc")
    p.e(f"v_mov_b32 v{V + 5}, v{V + 4}")
    for i in range(1, 16):
        p.e(f"v_mov_b64 {vr(V + 8 * (i >> 1) + 4 + 2 * (i & 1), 2)}, {vr(V + 4, 2)}")
    for i in range(1, 4):
        p.e(f"s_add_u32 s{sKV0 + i}, s{sKV0}, {i * 4096}")
    p.e(f"s_mov_b32 s{sRET}, {SPIN}")
    p.e(f"v_bfe_u32 v{t}, v0, 3, 2\nv_lshlrev_b32 v{aK}, 9, v{t}")
    p.e(f"v_and_b32 v{t}, 7, v0\nv_lshl_add_u32 v{aK}, v{t}, 4, v{aK}")
    p.e(f"v_and_b32 v{aV}, 15, v0\nv_lshlrev_b32 v{aV}, 4, v{aV}\nv_bfe_u32 v{t}, v0, 4, 1\nv_lshl_add_u32 v{aV}, v{t}, 10, v{aV}\nv_lshrrev_b32 v{t}, 5, v0")
    p.e(f"v_lshl_add_u32 v{aK}, v{t}, 7, v{aK}\nv_lshl_add_u32 v{aV}, v{t}, 9, v{aV}\nv_add_u32 v{aV}, 256, v{aV}")
    if PREP < 3:
        p.e(f"s_lshr_b32 s6, s{sW}, 2\ns_cmp_le_u32 s6, s{sLAY}\ns_cbranch_scc1 L_a_noprep")
        if PREP == 1:
            prep_loads(p, prep_regs(40), 71)
        p.e("s_barrier ; PUB")
        if PREP == 2:
            prep_loads(p, prep_regs(40), 71)
        p.waitall(lg=False)
        prep_compute(p, prep_regs(40), 80)
        p.e("s_branch L_a_ld")
        p.label("L_a_noprep")
    p.waitall()
    p.e(f"s_lshr_b32 s6, s{sW}, 1\ns_lshl_b32 s7, s{sLAY}, 2\ns_add_u32 s6, s6, s7\ns_cmp_lg_u32 s6, 1\ns_cbranch_scc1 L_a_notag")
    flag_store(p, O, aQ, "s79")
    p.label("L_a_notag")
    p.bar("PUB")
    p.q["vm"] = []
    p.label("L_a_ld")
    stamp(p, 4)
    p.e("s_setprio 3")
    for kt in range(8):
        kv_loads(p, kt)
    p.e("s_setprio 0")
    for i in range(8):
        p.e(f"v_mov_b64 {vr(O + 2 * i, 2)}, 0")
    p.waitall(vm=False)
    p.label("L_a_q0")
    p.e(f"ds_read_b128 {vr(Q, 4)}, v{aZ} offset:{QRDY}")
    p.e(f"v_min3_u32 v{Q}, v{Q}, v{Q + 1}, v{Q + 2}\nv_min_u32 v{Q}, v{Q}, v{Q + 3}\nv_cmp_lt_u32 vcc, s{sLAY}, v{Q}")
    p.e("s_cbranch_vccnz L_a_q0ok\ns_sleep 1\ns_branch L_a_q0")
    p.label("L_a_q0ok")
    p.e(f"ds_read_b128 {vr(Q, 4)}, v{aQ} offset:{QF}")

    def check(kt):
        p.e(f"v_max_u32 v{T}, v{K + 4 * kt}, v{V + 8 * kt}")
        p.e(f"v_cmp_eq_u32 vcc, -1, v{T}")
        p.e(f"s_cbranch_vccnz L_a_retry{kt}")
        p.label(f"L_a_back{kt}")
        r = retry
        r.label(f"L_a_retry{kt}")
        r.e(f"s_sub_u32 s{sRET}, s{sRET}, 1\ns_cmp_lt_i32 s{sRET}, 0\ns_cbranch_scc1 L_a_back{kt}")
        r.e(f"s_sleep {OPT.get('d2', 6)}")
        kv_loads(r, kt)
        r.waitall(lg=False)
        r.e(f"v_max_u32 v{T}, v{K + 4 * kt}, v{V + 8 * kt}")
        r.e(f"v_cmp_eq_u32 vcc, -1, v{T}")
        r.e(f"s_cbranch_vccnz L_a_retry{kt}\ns_branch L_a_back{kt}")

    def vswap(kt):
        for i in range(4):
            p.e(f"v_permlane16_swap_b32 v{V + 8 * kt + i}, v{V + 8 * kt + 4 + i}")

    def Sb(i):
        return S + 16 * (i & 1)

    def qk(kt):
        p.e(f"v_mfma_f32_32x32x16_bf16 {vr(Sb(kt), 16)}, {vr(K + 4 * kt, 4)}, {vr(Q, 4)}, 0")

    def pv(kt, s):
        p.e(f"v_smfmac_f32_32x32x32_bf16 {vr(O, 16)}, {vr(V + 8 * kt + 4 * s, 4)}, {vr(Sb(kt) + 8 * s, 8)}, v{IDX}")

    def put_partial():
        p.e(f"ds_write_b128 v{aP}, {vr(O, 4)}\nds_write_b128 v{aP}, {vr(O + 4, 4)} offset:1024\nds_write_b32 v{aL}, v{O + 8}")

    check(0)
    qk(0)
    vswap(0)
    stamp(p, 5)
    for j in range(8):
        for kt in range(8):
            first = j > 0 and kt == 0
            last = j == 7 and kt == 7
            for e in range(16):
                p.e(f"v_exp_f32 v{Sb(kt) + e}, v{Sb(kt) + e}")
                if e == 1 and not (j == 0 and kt == 0): pv((kt - 1) % 8, 1)
                if e == 4 and not last:
                    if j == 0 and kt < 7: check(kt + 1)
                    qk((kt + 1) % 8)
                    if j == 0 and kt < 7: vswap(kt + 1)
                    if kt == 6 and j < 7:
                        p.e(f"ds_read_b128 {vr(Q, 4)}, v{aQ} offset:{QF + (j + 1) * 1024}")
                if e == (12 if first else 9): pv(kt, 0)
                if e == 8 and first:
                    put_partial()
                    p.e(f"v_mfma_f32_32x32x8bf16_1k {vr(O, 16)}, {vr(aZ, 2)}, {vr(aZ, 2)}, 0")
                    p.e("s_setprio 0")
            if j > 0 and kt == 1:
                p.waitall(vm=False)
                p.bar(f"Y{j}")
            if kt == 5:
                p.bar(f"X{j}")
                p.e("s_setprio 1")
    pv(7, 1)
    put_partial()
    p.waitall()
    p.e("s_setprio 0")
    p.bar("Y8")
    stamp(p, 6)
    Yr = O
    p.bar("X8")
    for i in range(4):
        p.e(f"v_mov_b64 {vr(Yr + 2 * i, 2)}, 0")
    p.e(f"s_lshl_b32 s6, s{sW}, 1\nv_add_u32 v{t}, s6, v{aQ}")
    for i in range(8):
        p.e(f"ds_read_u16_d16_hi v{Yr + i}, v{t} offset:{YB + i * 1024}")
    p.e(f"s_mul_i32 s6, s{sW}, {RS}\ns_add_u32 s6, s6, {PB}\nv_lshlrev_b32 v{t + 2}, 5, v0\nv_add_u32 v{t + 2}, s6, v{t + 2}")
    p.e(f"s_lshl_b32 s6, s{sLAY}, 1\ns_add_u32 s6, s6, s{sW}\ns_cmp_ge_u32 s6, 2\ns_cbranch_scc1 L_a_nowkv")
    p.begin_if("wkv1")
    wkv_reads(p)
    p.end_if()
    p.label("L_a_nowkv")
    p.bar("OUT")
    p.e(f"ds_read_b128 {vr(O + 8, 4)}, v{t + 2}\nds_read_b128 {vr(O + 12, 4)}, v{t + 2} offset:16")
    stamp(p, 7)
    for i in range(8):
        p.e(f"v_add_f32 v{X + i}, v{X + i}, v{O + 8 + i}")
    layernorm(p, X, T)
    for i in range(8):
        p.e(f"v_fma_f32 v{O + 8 + i}, v{X + i}, s68, v{T}")
    for i in range(8):
        p.e(f"v_fmac_f32 v{X + i}, v{O + 8 + i}, v{Yr + i}")
    p.e(f"s_cmp_lg_u32 s{sLAY}, 0\ns_cbranch_scc1 L_a_final")
    p.e(f"s_mov_b32 s{sLAY}, 1\ns_add_u32 s{sPUB}, s{sPUB}, {KV2 - KV1}\ns_add_u32 s{sKV0}, s{sKV0}, {KV2 - KV1}")
    if OPT["stamps"]:
        p.e("s_nop 1\nv_mov_b32_dpp v22, v23 row_shr:8 row_mask:0xf bank_mask:0xf\ns_mov_b64 exec, 0xff00\nv_mov_b32 v23, v22\ns_mov_b64 exec, -1")
    p.e("s_branch L_a_layer")
    p.label("L_a_final")
    for i in range(4):
        p.e(f"v_cvt_pk_bf16_f32 v{Q + i}, v{X + 2 * i}, v{X + 2 * i + 1}")
    srd(p, 40, pOUT, 0x200000)
    p.e(f"buffer_store_dwordx4 {vr(Q, 4)}, v{aQ}, {SA}, s70 offen")
    p.e(f"s_or_b32 s6, s{sO}, s{sW}\ns_cmp_lg_u32 s6, 0\ns_cbranch_scc1 L_a_end")
    p.e(f"v_mov_b32 v{t}, s{sEP}\ns_mov_b64 exec, 1")
    p.e(f"buffer_store_dword v{t}, v{aZ}, {WS}, 0 offen")
    p.e("s_mov_b64 exec, -1")
    p.label("L_a_end")
    stamp(p, 0)
    stamp_flush(p)
    if "echo" in OPT:
        p.e("s_add_u32 s94, s94, 7000")
        if "only" in OPT:
            p.e(f"s_cmp_lg_u32 s2, {OPT['only']}\ns_cbranch_scc1 L_exit")
        if "onlyw" in OPT:
            p.e(f"s_cmp_lg_u32 s{sW}, {OPT['onlyw']}\ns_cbranch_scc1 L_exit")
        p.label("L_echo")
        p.e("s_sleep 1\ns_memrealtime s[92:93]")
        p.waitall(vm=False)
        p.e("s_sub_u32 s6, s94, s92\ns_cmp_gt_i32 s6, 0\ns_cbranch_scc1 L_echo")
    p.e("s_endpgm")
    p.ins += retry.ins
    return p


hW, hIDX, hXN, hQW, hPR, hLR, hOW, hMX, hH, hU, hZ = 1, 2, 3, 4, 5, 6, 7, 9, 10, 11, 15
hT0 = 12
OACC, QACC, AF, HT, SACC, RING = 16, 48, 52, 60, 84, 116
sH, sHB, sD, sSO = 56, 57, 58, 59


class Stream:
    def __init__(self, p, frags, slots):
        self.p, self.frags, self.free = p, frags, list(slots)
        self.next_issue = 0
        self.inflight = []
        self.cur_so = None
        self.retired = set()
        self.limit = len(frags)

    def pump(self, maxn=99):
        n = 0
        while self.free and self.next_issue < self.limit and n < maxn:
            off = self.frags[self.next_issue]
            slot = self.free.pop(0)
            base = off & ~4095
            if base != self.cur_so:
                self.p.e(f"s_add_u32 s{sSO}, s{sHB}, {base}")
                self.cur_so = base
            for J in range(2):
                self.p.e(f"buffer_load_dwordx4 {vr(slot + 4 * J, 4)}, v{hW}, {WS}, s{sSO} offen offset:{(off & 4095) + J * 1024} sc1")
            self.inflight.append(slot)
            self.next_issue += 1
            n += 1

    def take(self):
        return self.inflight.pop(0)

    def release(self, slot, pump=True):
        if slot not in self.retired:
            self.free.append(slot)
        if pump:
            self.pump()


def merge(a, b):
    a, b = list(a), list(b)
    i = j = 0
    while i < len(a) or j < len(b):
        if j >= len(b) or (i < len(a) and i * len(b) <= j * len(a)):
            a[i](); i += 1
        else:
            b[j](); j += 1


def helper_wave():
    p = Prog("help")
    p.stampreg = "v8"
    slow = Prog("hslow")
    t = hT0

    def wqn():
        srd(p, 40, pWQ, 0x80000)
        p.e("v_lshlrev_b32 v62, 1, v14\nv_and_b32 v63, 7, v0\nv_xor_b32 v62, v62, v63\nv_lshlrev_b32 v62, 4, v62")
        p.e("v_lshrrev_b32 v63, 3, v0\nv_lshl_add_u32 v62, v63, 10, v62\nv_xor_b32 v63, 64, v62")
        p.e(f"s_lshl_b32 s6, s{sH}, 17\ns_add_u32 s7, s{sHB}, {WQN}")
        p.e(f"s_lshl_b32 s61, s{sO}, 11")
        for i in range(16):
            p.e("s_and_b32 s61, s61, 0x3c00\ns_add_u32 m0, s7, s61\ns_lshl_b32 s60, s61, 3\ns_add_u32 s60, s60, s6")
            p.e(f"buffer_load_dwordx4 v{62 + (i & 1)}, {SA}, s60 offen lds")
            p.e("s_add_u32 s61, s61, 1024")

    p.label("L_helper")
    p.e(f"s_sub_u32 s{sH}, s{sW}, 8\ns_lshl_b32 s{sHB}, s{sH}, 14")
    p.e(f"v_lshlrev_b32 v{hW}, 4, v0\nv_mov_b32 v{hZ}, 0")
    p.e(f"s_lshl_b32 s6, s{sO}, 2\ns_load_dword s{sD}, s[{pSD}:{pSD + 1}], s6")
    p.e(f"v_and_b32 v60, 31, v0\nv_lshlrev_b32 v60, 4, v60\nv_lshrrev_b32 v61, 5, v0\nv_lshl_add_u32 v60, v61, 17, v60")
    p.e(f"v_mov_b64 v[64:65], -1\nv_mov_b64 v[66:67], -1\ns_lshl_b32 s6, s{sO}, 9\ns_add_u32 s6, s6, {KV1}")
    p.e(f"s_cmp_lg_u32 s{sH}, 0\ns_cbranch_scc1 L_h_noclr")
    ctok = p.e(f"buffer_store_dwordx4 v[64:67], v60, {WS}, s6 offen sc1")
    p.label("L_h_noclr")
    p.e("s_setprio 0")
    p.e(f"s_lshr_b32 s70, s{sH}, 1\ns_and_b32 s71, s{sH}, 1\ns_lshl_b32 s6, s{sO}, 1\ns_add_u32 s72, s6, s70")
    p.e(f"s_lshl_b32 s6, s72, 12\ns_add_u32 s52, s{pSK}, s6\ns_addc_u32 s53, s{pSK + 1}, 0\ns_mov_b32 s54, 0x1000\ns_mov_b32 s55, 0x20000")
    p.e(f"s_mul_i32 s73, s{sH}, {2 * CS}\ns_add_u32 s73, s73, {HB}")
    p.e(f"s_mul_i32 s74, s{sH}, 3072\ns_add_u32 s74, s74, {UB}")
    p.e(f"s_lshl_b32 s75, s{sH}, 12\ns_add_u32 s75, s75, {SX}")
    p.e(f"v_and_b32 v30, 31, v0\nv_and_b32 v{t + 1}, 7, v0")
    p.e(f"v_and_b32 v{hIDX}, 1, v0\nv_mul_u32_u24 v{hIDX}, 0xaaaa, v{hIDX}\nv_add_u32 v{hIDX}, 0x4444, v{hIDX}")
    p.e(f"v_lshrrev_b32 v{t}, 4, v0\nv_lshlrev_b32 v{hXN}, 5, v{t}\nv_xor_b32 v{hXN}, v{hXN}, v{hW}")
    p.e(f"v_bfe_u32 v{hQW}, v0, 3, 1\nv_lshlrev_b32 v{hQW}, 9, v{hQW}\nv_lshl_add_u32 v{hQW}, v{t}, 5, v{hQW}")
    p.e(f"v_lshl_add_u32 v{hQW}, v{t + 1}, 1, v{hQW}\ns_lshl_b32 s6, s{sH}, 7\nv_add_u32 v{hQW}, s6, v{hQW}")
    p.e(f"s_lshl_b32 s6, s70, 10\ns_lshl_b32 s7, s71, 3\ns_add_u32 s6, s6, s7\ns_add_u32 s6, s6, {PB}\nv_add_u32 v{hPR}, s6, v{hW}")
    p.e(f"v_lshlrev_b32 v{hLR}, 4, v30")
    p.e(f"v_lshrrev_b32 v{t + 2}, 5, v0\nv_lshlrev_b32 v{hOW}, 5, v30\nv_lshl_add_u32 v{hOW}, v{t + 2}, 4, v{hOW}")
    p.e(f"s_lshl_b32 s6, s{sH}, 2\nv_add_u32 v{hOW}, s6, v{hOW}\nv_mov_b32 v{hMX}, 0")
    p.e(f"v_add_u32 v60, 1, v30\nv_and_b32 v61, 3, v60\nv_sub_u32 v60, v60, v61\nv_mul_u32_u24 v61, {CS}, v61")
    p.e(f"v_lshl_add_u32 v61, v60, 1, v61\nv_lshl_add_u32 v61, v{t + 2}, 4, v61")
    p.e(f"s_mul_i32 s6, s70, {4 * CS}\ns_lshl_b32 s7, s71, 10\ns_add_u32 s6, s6, s7\ns_add_u32 s6, s6, {HB}\nv_add_u32 v{hH}, s6, v61")
    p.e(f"v_sub_u32 v60, 31, v30\nv_lshlrev_b32 v60, 4, v60\nv_mul_u32_u24 v61, 1536, v{t + 2}\nv_add_u32 v60, v60, v61")
    p.e(f"s_mul_i32 s76, s70, 6144\ns_add_u32 s76, s76, {UB}\ns_lshl_b32 s7, s71, 8\ns_add_u32 s6, s76, s7\nv_add_u32 v{hU}, s6, v60")
    p.e(f"v_lshlrev_b32 v166, 5, v0\nv_lshlrev_b32 v167, 5, v30\ns_lshl_b32 s77, s{sH}, 11\ns_add_u32 s83, s77, {FLAGO}\ns_add_u32 s77, s77, {FLAGQ}")
    p.e(f"s_lshr_b32 s6, s{sO}, 3\ns_lshl_b32 s6, s6, 10\ns_add_u32 s79, s6, {FLAGU}")
    p.waitall(vm=False)
    p.e(f"s_add_u32 s{sEP}, s{sEP}, 0x9e3779b1")
    p.e(f"s_lshl_b32 s6, s{sD}, 16\ns_and_b32 s7, s{sD}, 0xffff0000\ns_cmp_eq_u32 s70, 0\ns_cselect_b32 s{sD}, s6, s7")
    if OPT["stamps"]:
        p.e("v_mov_b32 v8, 0\nv_writelane_b32 v8, s90, 0")
    p.e(f"s_cmp_lg_u32 s{sH}, 0\ns_cbranch_scc1 L_h_noann")
    p.wait(ctok)
    p.e(f"s_lshl_b32 s6, s{sO}, 7\ns_add_u32 s6, s6, {FLAGC}")
    flag_store(p, 64, hW, "s6", 255)
    p.label("L_h_noann")
    if OPT.get("wqn", 0) == 0:
        wqn()
    for i in range(16):
        p.e(f"v_mov_b64 {vr(OACC + 2 * i, 2)}, 0")
    p.e(f"v_lshlrev_b32 v60, 4, v{t + 2}\nv_bfe_u32 v61, v0, 4, 1\nv_bfe_u32 v62, v0, 3, 1\nv_lshl_add_u32 v61, v62, 1, v61")
    p.e("v_lshl_add_u32 v60, v61, 2, v60\nv_bfe_u32 v62, v0, 2, 1\nv_add_u32 v60, v60, v62\nv_lshlrev_b32 v60, 7, v60")
    p.e(f"v_xor_b32 v61, s{sH}, v61\nv_lshl_add_u32 v60, v61, 5, v60\nv_and_b32 v62, 3, v0\nv_lshl_add_u32 v60, v62, 3, v60\nv_add_u32 v60, {WQN}, v60")
    stamp(p, 1)
    p.e("s_setprio 2")
    p.bar("XN")
    if OPT.get("wqn", 0) == 1:
        wqn()
    p.e(f"v_lshlrev_b32 v63, 7, v0\ns_lshl_b32 s60, s{sH}, 13\ns_add_u32 s60, s60, {FLAGC}")
    poll(p, "h_fc", f"buffer_load_dword v164, v63, {WS}, s60 offen sc1", [164], 78)
    stamp(p, 2)
    p.bar("PUB")
    stamp(p, 3)

    frags = []
    for L in range(2):
        order = ["Q0", "Q1", "Q2", "O0", "Q3", "O1", "Q4", "O2", "Q5", "O3", "Q6", "O4", "Q7", "O5", "O6", "O7"]
        for nm in order:
            base = (WQS if nm[0] == "Q" else WOS) + int(nm[1]) * 65536
            frags += [base + i * 2048 for i in range(8)]
    sacc_slots = [SACC + 8 * i for i in range(4)]
    st = Stream(p, frags, sacc_slots + [RING + 8 * i for i in range(6)])
    st.retired = set(sacc_slots)
    st.limit = 8
    for kb in range(8):
        slot = st.free.pop(0)
        for a in range(4):
            p.e(f"ds_read_b64_tr_b16 {vr(slot + 2 * a, 2)}, v60 offset:{(64 * kb + 32 * (a >> 1) + 2 * (a & 1)) * 128}")
        st.inflight.append(slot)
    st.next_issue = 8

    def qproj(tile):
        def head():
            p.e(f"ds_read_b128 {vr(QACC, 4)}, v{hZ}")
            p.e(f"ds_read_b128 {vr(AF, 4)}, v{hXN} offset:{XN}")
        yield head
        for kb in range(8):
            def step(kb=kb):
                if kb < 7:
                    p.e(f"ds_read_b128 {vr(AF + 4 * ((kb + 1) & 1), 4)}, v{hXN} offset:{XN + (kb + 1) * 1024}")
                s = st.take()
                p.e(f"v_smfmac_f32_16x16x64_bf16 {vr(QACC, 4)}, {vr(AF + 4 * (kb & 1), 4)}, {vr(s, 8)}, v{hIDX}")
                st.release(s)
            yield step

        def fin():
            p.e(f"v_add_f32 v{t}, v{QACC}, v{QACC + 1}\nv_add_f32 v{t + 1}, v{QACC + 2}, v{QACC + 3}")
            p.e(f"v_cvt_pk_bf16_f32 v{t}, v{t}, v{t + 1}")
            p.e(f"ds_write_b16 v{hQW}, v{t} offset:{QF + tile * 1024}\nds_write_b16_d16_hi v{hQW}, v{t} offset:{QF + tile * 1024 + 16}")
        yield fin

    def reduce():
        a, L = HT, HT + 16
        p.e(f"ds_read_b128 {vr(L, 4)}, v{hLR} offset:{LP}\nds_read_b128 {vr(L + 4, 4)}, v{hLR} offset:{LP + 512}")
        for w in range(8):
            p.e(f"ds_read_b64 {vr(a + 2 * w, 2)}, v{hPR} offset:{w * 2048}")
        for i in range(1, 8):
            p.e(f"v_add_f32 v{L}, v{L}, v{L + i}")
        p.e(f"v_rcp_f32 v{L + 1}, v{L}")
        p.waitall(vm=False)
        for w in range(1, 8):
            p.e(f"v_add_f32 v{a}, v{a}, v{a + 2 * w}\nv_add_f32 v{a + 1}, v{a + 1}, v{a + 2 * w + 1}")
        p.e(f"v_mul_f32 v{a}, v{a}, v{L + 1}\nv_mul_f32 v{a + 1}, v{a + 1}, v{L + 1}")
        p.e(f"v_cvt_pk_bf16_f32 v{a}, v{a}, v{a + 1}")
        p.e(f"ds_write_b32 v{hOW}, v{a} offset:{OA}")
        p.e(f"v_max3_f32 v{hMX}, v{hMX}, v{L}, v{L + 1}")

    def oproj(pump=True):
        yield lambda: p.e(f"ds_read_b128 {vr(AF, 4)}, v{hW} offset:{OA}")
        for ct in range(8):
            def step(ct=ct):
                s = st.take()
                p.e(f"v_smfmac_f32_16x16x64_bf16 {vr(OACC + 4 * ct, 4)}, {vr(AF, 4)}, {vr(s, 8)}, v{hIDX}")
                st.release(s, pump)
            yield step

    def ssm(i0, n):
        Al, Ah, B0, B1 = HT, HT + 4, HT + 8, HT + 12
        D0, D1 = SACC, SACC + 16

        def boff(i):
            b8 = 2 * i - 4
            return (b8 & 3) * 1536 + ((b8 >> 2) + 1) * 16

        rAl = lambda i: p.e(f"ds_read_b64 {vr(Al, 2)}, v{hH} offset:{32 * i}\nds_read_b64 {vr(Al + 2, 2)}, v{hH} offset:{32 * i + 8}")
        rAh = lambda i: p.e(f"ds_read_b64 {vr(Ah, 2)}, v{hH} offset:{32 * i + 2048}\nds_read_b64 {vr(Ah + 2, 2)}, v{hH} offset:{32 * i + 2056}")
        rB0 = lambda i: p.e(f"ds_read_b128 {vr(B0, 4)}, v{hU} offset:{boff(i) + 512}")
        rB1 = lambda i: p.e(f"ds_read_b128 {vr(B1, 4)}, v{hU} offset:{boff(i)}")
        if n:
            yield lambda: (rB1(i0), rAl(i0), rB0(i0), rAh(i0))
        for i in range(i0, i0 + n):
            more = i + 1 < i0 + n

            def m1(i=i, more=more):
                p.e(f"v_mfma_f32_32x32x16_bf16 {vr(D1, 16)}, {vr(Al, 4)}, {vr(B1, 4)}, {vr(D1, 16) if i else 0}")
                if more: rB1(i + 1)

            def m2(i=i, more=more):
                p.e(f"v_mfma_f32_32x32x16_bf16 {vr(D0, 16)}, {vr(Al, 4)}, {vr(B0, 4)}, {vr(D0, 16) if i else 0}")
                if more: rAl(i + 1)

            def m3(i=i, more=more):
                p.e(f"v_mfma_f32_32x32x16_bf16 {vr(D1, 16)}, {vr(Ah, 4)}, {vr(B0, 4)}, {vr(D1, 16)}")
                if more: rB0(i + 1); rAh(i + 1)
            yield m1
            yield m2
            yield m3

    def ssm_send():
        p.e(f"v_add_u32 v{t}, s75, v{hW}")
        p.e("s_nop 7\ns_nop 3")
        p.waitall(vm=False)
        p.e("s_cmp_eq_u32 s71, 0\ns_cbranch_scc1 L_h_s0")
        for i in range(4):
            p.e(f"ds_write_b128 v{t}, {vr(SACC + 4 * i, 4)} offset:{i * 1024}")
        p.e("s_branch L_h_s1")
        p.label("L_h_s0")
        for i in range(4):
            p.e(f"ds_write_b128 v{t}, {vr(SACC + 16 + 4 * i, 4)} offset:{i * 1024}")
        p.label("L_h_s1")
        p.waitall(vm=False)

    ytok = [None]

    def ssm_finish():
        R = HT

        def a0():
            p.e(f"s_xor_b32 s82, s{sH}, 1\ns_lshl_b32 s82, s82, 12\ns_add_u32 s82, s82, {SX}\nv_add_u32 v164, s82, v{hW}")
            for i in range(4):
                p.e(f"ds_read_b128 {vr(R + 4 * i, 4)}, v164 offset:{i * 1024}")
            p.e(f"v_lshrrev_b32 v{t + 2}, 5, v0\nv_lshl_add_u32 v164, v{t + 2}, 3, v{hLR}")
            p.e(f"s_lshl_b32 s7, s71, 9\ns_sub_u32 s7, s76, s7\ns_add_u32 s7, s7, {63 * 16 + 8}\nv_sub_u32 v164, s7, v164")
            for b in range(4):
                p.e(f"ds_read_b64 {vr(R + 16 + 2 * b, 2)}, v164 offset:{(3 - b) * 1536}")
        yield a0

        def a1():
            p.waitall(vm=False)
            p.e("s_cmp_eq_u32 s71, 0\ns_cbranch_scc1 L_h_f0")
            for i in range(16):
                p.e(f"v_add_f32 v{R + i}, v{R + i}, v{SACC + 16 + i}")
            p.e("s_branch L_h_f1")
            p.label("L_h_f0")
            for i in range(16):
                p.e(f"v_add_f32 v{R + i}, v{R + i}, v{SACC + i}")
            p.label("L_h_f1")
            p.e(f"v_mul_u32_u24 v164, 5, v{hLR}\nv_lshl_add_u32 v164, v{t + 2}, 3, v164\nv_add_u32 v164, s82, v164")
        yield a1
        for b in range(4):
            def ab(b=b):
                u0, u1 = R + 16 + 2 * b, R + 17 + 2 * b
                p.e(f"v_and_b32 v165, 0xffff0000, v{u1}\nv_fmac_f32 v{R + 4 * b}, s{sD}, v165")
                p.e(f"v_lshlrev_b32 v165, 16, v{u1}\nv_fmac_f32 v{R + 4 * b + 1}, s{sD}, v165")
                p.e(f"v_and_b32 v165, 0xffff0000, v{u0}\nv_fmac_f32 v{R + 4 * b + 2}, s{sD}, v165")
                p.e(f"v_lshlrev_b32 v165, 16, v{u0}\nv_fmac_f32 v{R + 4 * b + 3}, s{sD}, v165")
                p.e(f"v_cvt_pk_bf16_f32 v{R + 4 * b}, v{R + 4 * b}, v{R + 4 * b + 1}\nv_cvt_pk_bf16_f32 v{R + 4 * b + 1}, v{R + 4 * b + 2}, v{R + 4 * b + 3}")
                p.e(f"ds_write_b64 v164, {vr(R + 4 * b, 2)} offset:{b * 16}")
            yield ab

        def a2():
            p.e(f"v_lshrrev_b32 v164, 2, v0\nv_lshl_add_u32 v164, v164, 4, v{hW}\nv_add_u32 v164, s82, v164")
            p.e(f"ds_read_b128 {vr(R, 4)}, v164\nds_read_b128 {vr(R + 4, 4)}, v164 offset:1280")
        yield a2

        def a3():
            p.e(f"s_lshl_b32 s6, s72, 12\ns_lshl_b32 s7, s71, 11\ns_add_u32 s6, s6, s7\ns_add_u32 s6, s6, {YT}")
            p.e(f"buffer_store_dwordx4 {vr(R, 4)}, v{hW}, {WS}, s6 offen sc1")
            ytok[0] = p.e(f"buffer_store_dwordx4 {vr(R + 4, 4)}, v{hW}, {WS}, s6 offen offset:1024 sc1")
        yield a3

    def checked(name, load, regs):
        for i, r in enumerate(regs):
            if i == 0:
                p.e(f"v_cmp_ne_u32 vcc, s{sEP}, v{r}")
            else:
                p.e(f"v_cmp_ne_u32 s[6:7], s{sEP}, v{r}\ns_or_b64 vcc, vcc, s[6:7]")
        p.e(f"s_cbranch_vccnz L_{name}_slow")
        p.label(f"L_{name}_back")
        slow.label(f"L_{name}_slow")
        poll(slow, name, load, regs, 78)
        slow.e(f"s_branch L_{name}_back")

    det = [16]
    cur = [0]

    def sync(name):
        p.waitall(vm=False)
        d = OPT["stamps"] and OPT.get("detail", 0) == cur[0]
        if d:
            stamp(p, det[0]); det[0] += 1
        p.bar(name)
        if d:
            stamp(p, det[0]); det[0] += 1

    def h_copies():
        r = SACC
        for ce in range(2):
            def dma(ce=ce):
                p.e(f"s_add_u32 m0, s73, {ce * CS + 64}\ns_lshl_b32 s6, s71, 2\ns_add_u32 s6, s6, {2 * ce}")
                for i in range(4):
                    p.e(f"buffer_load_dwordx4 v{hW}, s[52:55], s6 offen offset:{i * 1024} lds")
            yield dma

        def head():
            p.e(f"v_lshrrev_b32 v{r}, 5, v0\nv_lshrrev_b32 v{r + 1}, 3, v{hLR}\nv_lshl_add_u32 v{r + 2}, v{r}, 1, v{r + 1}")
            p.e(f"s_lshl_b32 s6, s71, 2\ns_sub_u32 s6, s6, 64\nv_add_u32 v{r + 2}, s6, v{r + 2}")
            p.e(f"buffer_load_ushort v{r + 2}, v{r + 2}, s[52:55], 0 offen")
            p.e(f"v_mul_u32_u24 v{r + 3}, {CS}, v{r}\nv_add3_u32 v{r + 3}, v{r + 3}, v{r + 1}, s73")
            p.e(f"v_mul_u32_u24 v{r}, 1536, v{r}\nv_add3_u32 v{r}, v{r}, v{hLR}, s74")
            p.e(f"ds_read_b128 {vr(r + 4, 4)}, v{hZ}")
            p.e(f"ds_write_b128 v{r}, {vr(r + 4, 4)} offset:1024")
        yield head

    SS = [0, 6, 11, 17, 22, 28, 32]

    def ssm_at(L, k):
        return ssm(SS[k], SS[k + 1] - SS[k]) if L == 0 and 0 <= k < 6 else []

    for L in range(2):
        cur[0] = L
        merge(qproj(0), [])
        p.e(f"v_mov_b32 v{t}, {L + 1}\nv_mov_b32 v{t + 1}, s{sH}\nv_lshlrev_b32 v{t + 1}, 2, v{t + 1}")
        p.e(f"ds_write_b32 v{t + 1}, v{t} offset:{QRDY}")
        stamp(p, 4 + 8 * L)
        if L == 1:
            p.bar("PUB")
        else:
            poll(p, "h_fw", f"buffer_load_dword v164, v166, {WS}, s77 offen sc1", [164], 78)
            st.limit = 16
            st.free = sacc_slots[:2] + st.free
            st.pump()
        if OPT["stamps"] and OPT.get("detail", 0) == L:
            stamp(p, det[0]); stamp(p, det[0] + 1); det[0] += 2
        merge(qproj(1), [])
        if L == 0:
            if PREP == 3:
                p.waitall(vm=False)
                prep_loads(p, prep_regs(48), sH)
            oload = f"buffer_load_dword v165, v166, {WS}, s83 offen sc1"
            p.e(oload)
            st.limit = 24
            st.pump()
        sync("X0")
        if L == 0:
            if PREP == 3:
                prep_compute(p, prep_regs(48), 75)
            stok = prep_store(p, prep_regs(48), sH, 75)
            checked("h_fo", oload, [165])
            st.limit = len(frags)
        sync("Y1")
        for j in range(1, 8):
            reduce()
            if L == 0 and j == 2:
                checked("h_fu", uload, [164])
                p.e(f"v_lshlrev_b32 v165, 6, v0\ns_lshl_b32 s6, s72, 12\ns_lshl_b32 s7, s71, 5\ns_add_u32 s6, s6, s7\ns_add_u32 s6, s6, {UR}\ns_add_u32 s7, s6, 16")
                p.e("s_mov_b32 m0, s74")
                p.e(f"buffer_load_dwordx4 v165, {WS}, s6 offen sc1 lds")
                p.e("s_add_u32 m0, s74, 1536")
                utok = p.e(f"buffer_load_dwordx4 v165, {WS}, s7 offen sc1 lds")
                p.e(f"ds_write_b16 v{SACC + 3}, v{SACC + 2}")
            side = ssm_at(L, 2 * j - 5)
            if L == 0 and j == 1:
                def utag():
                    p.wait(stok)
                    p.e(f"s_lshr_b32 s6, s{sO}, 5\ns_lshl_b32 s6, s6, 2\ns_add_u32 s6, s6, s{sH}\ns_lshl_b32 s6, s6, 5\ns_and_b32 s7, s{sO}, 31\ns_add_u32 s6, s6, s7\ns_lshl_b32 s6, s6, 5\ns_add_u32 s6, s6, {FLAGU}")
                    flag_store(p, SACC + 12, hW, "s6")
                side = [lambda: None, utag]
            if L == 0 and j == 6:
                def ytag():
                    p.wait(ytok[0])
                    p.e("s_and_b32 s6, s72, 7\ns_lshl_b32 s6, s6, 11\ns_lshr_b32 s7, s72, 3\ns_lshl_b32 s7, s7, 5\ns_add_u32 s6, s6, s7")
                    p.e(f"s_lshl_b32 s7, s71, 14\ns_add_u32 s6, s6, s7\ns_add_u32 s6, s6, {FLAG2}")
                    flag_store(p, HT + 4, hW, "s6")
                side = [ytag]
            merge(qproj(j + 1) if j < 7 else [], side)
            if L == 0 and j == 2:
                p.wait(utok)
            if L == 0 and j == 5:
                ssm_send()
            if L == 0 and j == 7:
                p.e(f"s_lshr_b32 s6, s{sO}, 7\ns_lshl_b32 s6, s6, 14\ns_lshl_b32 s7, s{sH}, 12\ns_add_u32 s6, s6, s7\ns_add_u32 s79, s6, {FLAG2}")
                yload = f"buffer_load_dword v164, v166, {WS}, s79 offen sc1\nbuffer_load_dword v165, v166, {WS}, s79 offen offset:2048 sc1"
                p.e(yload)
                checked("h_fy", yload, [164, 165])
                p.e(f"v_lshlrev_b32 v166, 15, v0\ns_lshl_b32 s6, s{sH}, 13\ns_lshl_b32 s7, s{sO}, 4\ns_add_u32 s6, s6, s7\ns_add_u32 s6, s6, {YT}\ns_add_u32 s7, s6, 4096")
                p.e(f"s_lshl_b32 s80, s{sH}, 11\ns_add_u32 m0, s80, {YB}")
                p.e(f"buffer_load_dwordx4 v166, {WS}, s6 offen sc1 lds")
                p.e(f"s_add_u32 m0, s80, {YB + 1024}")
                gtok = p.e(f"buffer_load_dwordx4 v166, {WS}, s7 offen sc1 lds")
            sync(f"X{j}")
            side = ssm_at(L, 2 * j - 4)
            if L == 0 and j == 1:
                side = h_copies()
            if L == 0 and j == 5:
                side = ssm_finish()
            merge(oproj(), side)
            if L == 0 and j == 1:
                uload = f"buffer_load_dword v164, v167, {WS}, s79 offen sc1"
                p.e(uload)
            if L == 0 and j == 5:
                st.retired = set()
                st.free += sacc_slots
                st.pump()
            if j == 7:
                p.e(f"v_lshrrev_b32 v{t}, 4, v0\nv_mul_u32_u24 v{t}, {2 * RS}, v{t}\nv_and_b32 v{t + 1}, 15, v0\nv_lshl_add_u32 v{t}, v{t + 1}, 5, v{t}")
                p.e(f"s_lshl_b32 s6, s{sH}, 9\ns_add_u32 s6, s6, {PB}\nv_add_u32 v{t}, s6, v{t}")
            sync(f"Y{j + 1}")
        reduce()
        if L == 0:
            p.wait(gtok)
        sync("X8")
        merge(oproj(pump=False), [])
        for ct in range(8):
            p.e(f"v_add_f32 v{HT + ct}, v{OACC + 4 * ct}, v{OACC + 4 * ct + 1}\nv_add_f32 v{HT + 8 + ct}, v{OACC + 4 * ct + 2}, v{OACC + 4 * ct + 3}")
            if ct == 3:
                p.e(f"ds_write_b128 v{t}, {vr(HT, 4)}\nds_write_b128 v{t}, {vr(HT + 8, 4)} offset:{RS}")
        p.e(f"ds_write_b128 v{t}, {vr(HT + 4, 4)} offset:16\nds_write_b128 v{t}, {vr(HT + 12, 4)} offset:{RS + 16}")
        sync("OUT")
        if L == 0:
            st.pump()
            for i in range(16):
                p.e(f"v_mov_b64 {vr(OACC + 2 * i, 2)}, 0")
            p.bar("XN")
    stamp_flush(p)
    p.e("s_endpgm")
    p.ins += slow.ins
    return p


def main():
    ref = open(f"cdna_kernels/{NAME}.s.ref").read()
    head = [l for l in ref.split("\n") if l.startswith(";") and "@launch" not in l]
    pro, att, hel = prologue(), attention_wave(), helper_wave()
    assert att.bars + att.bars == hel.bars, (att.bars, hel.bars)
    out = "\n".join(head) + f"\n; @launch grid=(256,1,1) block=(768,1,1) lds={LDS_SIZE}\n"
    out += f""".amdgcn_target "amdgcn-amd-amdhsa--gfx950"
.text
.globl {NAME}_kernel
.p2align 8
.type {NAME}_kernel,@function
{NAME}_kernel:
"""
    out += pro.text() + att.text() + hel.text() + "L_exit:\n    s_endpgm\n"
    out += f""".section .rodata,"a"
.p2align 6
.amdhsa_kernel {NAME}_kernel
  .amdhsa_next_free_vgpr 168
  .amdhsa_next_free_sgpr 96
  .amdhsa_accum_offset 168
  .amdhsa_group_segment_fixed_size 0
  .amdhsa_kernarg_size 112
  .amdhsa_user_sgpr_count 2
  .amdhsa_user_sgpr_kernarg_segment_ptr 1
  .amdhsa_system_sgpr_workgroup_id_x 1
.end_amdhsa_kernel
"""
    open(sys.argv[1], "w").write(out)
    print("nops added:", pro.nops_added, att.nops_added, hel.nops_added, "instr:", len(att.ins), len(hel.ins))


main()
```
